```python
import torch

def _softmax(x, axis=-1):
    return torch.softmax(x, dim=axis)

def _gelu(x):
    return torch.nn.functional.gelu(x, approximate='tanh')

def _silu(x):
    return torch.nn.functional.silu(x)

def _sigmoid(x):
    return torch.sigmoid(x)

def _layernorm(x, axis=-1, eps=1e-05):
    m = x.mean(dim=axis, keepdim=True)
    v = x.var(dim=axis, keepdim=True, unbiased=False)
    return (x - m) / torch.sqrt(v + eps)

def _scatter_add(tgt, idx, src, axis=0):
    return tgt.clone().index_add_(axis, idx, src)

def _segment_sum(src, seg, n):
    out = torch.zeros((n,) + src.shape[1:], dtype=src.dtype)
    return out.index_add_(0, seg, src)

def _pad(x, pw):
    flat = tuple((v for pair in reversed(pw) for v in pair))
    return torch.nn.functional.pad(x, flat)
kernel_name = 'adaLN_cond__ssm_conv_h3__glu_gated_glu__prompt'

def setup_inputs():

    _w = lambda a: (lambda t: t.to(torch.bfloat16) if t.is_floating_point() else t)(torch.as_tensor(a))

    def _A_setup():
        B, S, D = (1, 2048, 576)
        ks = 4
        return {'q': _w((lambda *s: torch.randn(*s, dtype=torch.bfloat16) * 0.05)(B, S, D)), 'k': _w((lambda *s: torch.randn(*s, dtype=torch.bfloat16) * 0.8)(B, S, D)), 'v': _w((lambda *s: torch.randn(*s, dtype=torch.bfloat16) * 0.8)(B, S, D)), 'shift_k': _w((lambda *s: torch.randn(*s, dtype=torch.bfloat16) * 0.8)(D, ks) * 0.5), 'ssm_k': _w((lambda *s: torch.randn(*s, dtype=torch.bfloat16) * 0.8)(D, S) * (1.0 / S ** 0.5)), 'ssm_D': _w((lambda *s: torch.randn(*s, dtype=torch.bfloat16) * 0.8)(D))}
    _A_in = _A_setup()

    def _B_setup():
        B, S, D, F = (1, 2048, 576, 4608)
        return {'x': _w((lambda *s: torch.randn(*s, dtype=torch.bfloat16) * 0.05)(B, S, D)), 'w_gate': _w((lambda *s: torch.randn(*s, dtype=torch.bfloat16) * 0.05)(D, F)), 'w_up': _w((lambda *s: torch.randn(*s, dtype=torch.bfloat16) * 0.05)(D, F)), 'w_down': _w((lambda *s: torch.randn(*s, dtype=torch.bfloat16) * 0.05)(F, D))}
    _B_in = _B_setup()
    return {'A_q': _A_in['q'], 'A_k': _A_in['k'], 'A_v': _A_in['v'], 'A_shift_k': _A_in['shift_k'], 'A_ssm_k': _A_in['ssm_k'], 'A_ssm_D': _A_in['ssm_D'], 'B_x': _B_in['x'], 'B_w_gate': _B_in['w_gate'], 'B_w_up': _B_in['w_up'], 'B_w_down': _B_in['w_down'], 'c': _w((lambda *s: torch.randn(*s, dtype=torch.bfloat16) * 0.1)(1, 576) * 8.0), 'w_mod': _w((lambda *s: torch.randn(*s, dtype=torch.bfloat16) * 0.1)(576, 6 * 576) * 576 ** (-0.5) * 8.0)}

def reference(A_q, A_k, A_v, A_shift_k, A_ssm_k, A_ssm_D, B_x, B_w_gate, B_w_up, B_w_down, c, w_mod):

    def _A_ref(q, k, v, shift_k, ssm_k, ssm_D):
        B, S, D = q.shape
        ks = shift_k.shape[-1]
        k_pad = _pad(k, ((0, 0), (ks - 1, 0), (0, 0)))
        k_shift = torch.zeros_like(k)
        for t in range(ks):
            k_shift = k_shift + k_pad[:, t:t + S, :] * shift_k[:, ks - 1 - t][None, None, :]
        kv = k_shift * v
        L = 2 * S
        kv_pad = _pad(kv, ((0, 0), (0, S), (0, 0)))
        kf_pad = _pad(ssm_k, ((0, 0), (0, S)))
        kv_f = (lambda x, axes=(-2, -1): torch.fft.rfft2(x.float(), dim=axes))(kv_pad[:, None, :, :], axes=(1, 2))
        kf_f = (lambda x, axes=(-2, -1): torch.fft.rfft2(x.float(), dim=axes))(kf_pad[:, None, :], axes=(1, 2))
        kf_f = (lambda x, *d: x.permute(*d))(kf_f, 1, 2, 0)
        y_f = kv_f * kf_f[None, :, :, :]
        y = (lambda x, s, axes=(-2, -1): torch.fft.irfft2(x, s=s, dim=axes).to(torch.bfloat16))(y_f, (1, L), axes=(1, 2))[:, 0, :S, :]
        y = y + kv * ssm_D[None, None, :]
        return q * y

    def _B_ref(x, w_gate, w_up, w_down):
        g = torch.einsum('bsd,df->bsf', x, w_gate)
        u = torch.einsum('bsd,df->bsf', x, w_up)
        h = _sigmoid(g) * u
        return torch.einsum('bsf,fd->bsd', h, w_down)
    x = A_q
    mod = (_silu(c) @ w_mod).reshape(c.shape[0], 6, 1, -1)
    sa, ca, ga, sb, cb, gb = (mod[:, 0].clone(), mod[:, 1].clone(), mod[:, 2].clone(), mod[:, 3].clone(), mod[:, 4].clone(), mod[:, 5].clone())
    h = _layernorm(x, axis=-1) * (1 + ca) + sa
    x = x + ga * _A_ref(h, A_k, A_v, A_shift_k, A_ssm_k, A_ssm_D)
    h = _layernorm(x, axis=-1) * (1 + cb) + sb
    x = x + gb * _B_ref(h, B_w_gate, B_w_up, B_w_down)
    return x
```

```python
class Asm:
    def __init__(self):
        self.lines = []
        self._lbl = 0

    def __call__(self, s):
        for ln in s.split("\n"):
            ln = ln.strip()
            if ln:
                self.lines.append(ln if ln.endswith(":") else "    " + ln)

    def c(self, s):
        self.lines.append("    ; " + s)

    def label(self, base="L"):
        self._lbl += 1
        return f"{base}_{self._lbl}"

    def text(self):
        return "\n".join(self.lines) + "\n"


def vr(b, n=1):
    return f"v{b}" if n == 1 else f"v[{b}:{b+n-1}]"


def ar(b, n=1):
    return f"a{b}" if n == 1 else f"a[{b}:{b+n-1}]"


def sr(b, n=1):
    return f"s{b}" if n == 1 else f"s[{b}:{b+n-1}]"


def srd(A, d, base, nbytes, extra_off=None):
    if extra_off:
        A(f"s_add_u32 s{d}, s{base}, {extra_off}")
        A(f"s_addc_u32 s{d+1}, s{base+1}, 0")
    else:
        A(f"s_mov_b32 s{d}, s{base}")
        A(f"s_mov_b32 s{d+1}, s{base+1}")
    A(f"s_mov_b32 s{d+2}, {nbytes}")
    A(f"s_mov_b32 s{d+3}, 0x20000")


def kernel_header(A, name):
    A(f".globl {name}")
    A(".p2align 8")
    A(f".type {name},@function")
    A(f"{name}:")


def kernel_desc(name, vgpr, sgpr, accum):
    return f""".amdhsa_kernel {name}
  .amdhsa_next_free_vgpr {vgpr}
  .amdhsa_next_free_sgpr {sgpr}
  .amdhsa_accum_offset {accum}
  .amdhsa_group_segment_fixed_size 0
  .amdhsa_kernarg_size 120
  .amdhsa_user_sgpr_count 2
  .amdhsa_user_sgpr_kernarg_segment_ptr 1
  .amdhsa_system_sgpr_workgroup_id_x 1
  .amdhsa_float_denorm_mode_32 3
  .amdhsa_float_denorm_mode_16_64 3
.end_amdhsa_kernel
"""
```

```python
from asmlib import *

MOD_OFF = 0
Y_OFF = 0x10000
H2F_OFF = 0x250000
X1B_OFF = 0x490000
PART_OFF = 0x700000
ACT_BYTES = 2359296

KCOPY = 4416
KCH = 4 * KCOPY
XBASE = 4 * KCH
XCH = 4608
K1_LDS = XBASE + 4 * XCH


def unpack_lo(A, d, s):
    A(f"v_lshlrev_b32 v{d}, 16, v{s}")


def unpack_hi(A, d, s):
    A(f"v_and_b32 v{d}, 0xffff0000, v{s}")


def gen_k1(A, name="conv_kernel", prefetch_w=True):
    kernel_header(A, name)
    A("s_cmp_ge_u32 s2, 256")
    A("s_cbranch_scc1 K1_END")
    A("s_load_dwordx8 s[4:11], s[0:1], 8")
    A("s_load_dwordx2 s[12:13], s[0:1], 40")
    A("s_load_dwordx2 s[14:15], s[0:1], 112")
    A("s_load_dwordx4 s[16:19], s[0:1], 56")
    A("s_load_dwordx2 s[20:21], s[0:1], 72")
    A("s_load_dwordx4 s[24:27], s[0:1], 80")
    A("v_lshrrev_b32 v1, 6, v0")
    A("v_and_b32 v2, 63, v0")
    A("v_readfirstlane_b32 s28, v1")
    A("s_cmp_ge_u32 s2, 144")
    A("s_cbranch_scc1 K1_OTHER")
    A("s_and_b32 s29, s2, 7")
    A("s_lshr_b32 s30, s2, 3")
    A("s_lshl_b32 s31, s29, 4")
    A("s_add_u32 s31, s31, s30")
    A("s_sub_u32 s40, s30, 16")
    A("s_lshl_b32 s40, s40, 3")
    A("s_add_u32 s40, s40, s29")
    A("s_add_u32 s40, s40, 128")
    A("s_cmp_lt_u32 s30, 16")
    A("s_cselect_b32 s31, s31, s40")
    A("s_lshl_b32 s41, s31, 3")
    A("s_waitcnt lgkmcnt(0)")
    srd(A, 32, 4, ACT_BYTES)
    srd(A, 36, 6, ACT_BYTES)
    A("s_and_b32 s42, s31, 15")
    A("s_mul_i32 s42, s42, 147456")
    A("s_lshr_b32 s43, s31, 4")
    A("s_lshl_b32 s43, s43, 7")
    A("s_add_u32 s42, s42, s43")
    A("s_add_u32 s43, s42, 73728")
    A("v_lshrrev_b32 v3, 3, v0")
    A("v_mul_u32_u24 v3, 1152, v3")
    A("v_and_b32 v4, 7, v0")
    A("v_lshl_add_u32 v3, v4, 4, v3")
    A("buffer_load_dwordx4 v[240:243], v3, s[32:35], s42 offen")
    A("buffer_load_dwordx4 v[244:247], v3, s[36:39], s42 offen")
    A("buffer_load_dwordx4 v[248:251], v3, s[32:35], s43 offen")
    A("buffer_load_dwordx4 v[252:255], v3, s[36:39], s43 offen")
    A("s_cmp_ge_u32 s28, 4")
    A("s_cbranch_scc1 K1_LOADER")
    gen_k1_mfma(A)
    A("s_endpgm")
    A("K1_LOADER:")
    gen_k1_loader(A)
    A("s_endpgm")
    A("K1_OTHER:")
    gen_k1_other(A, prefetch_w)
    A("K1_END:")
    A("s_endpgm")


def gen_k1_loader(A):
    A("s_sub_u32 s44, s28, 4")
    A("s_lshl_b32 s45, s31, 5")
    A("s_add_u32 s46, s8, s45")
    A("s_addc_u32 s47, s9, 0")
    A("s_load_dwordx8 s[52:59], s[46:47], 0")
    A("s_mul_i32 s48, s44, 147456")
    A("s_add_u32 s48, s48, s41")
    A("v_mul_u32_u24 v3, 2304, v2")
    A("v_add_u32 v3, s48, v3")
    for p in range(4):
        R = 16 + 14 * p
        A(f"s_mov_b32 s49, {512 * p * 1152}")
        A(f"s_add_u32 s50, s48, {(512 * p - 3) * 1152 & 0xffffffff}")
        A(f"v_mov_b32 v{4 + p}, s50")
        A(f"buffer_load_dwordx2 v[{R}:{R+1}], v3, s[32:35], s49 offen")
        A(f"buffer_load_dwordx2 v[{R+2}:{R+3}], v3, s[32:35], s49 offen offset:1152")
        A(f"buffer_load_dwordx2 v[{R+4}:{R+5}], v3, s[36:39], s49 offen")
        A(f"buffer_load_dwordx2 v[{R+6}:{R+7}], v3, s[36:39], s49 offen offset:1152")
        A(f"buffer_load_dwordx2 v[{R+12}:{R+13}], v{4+p}, s[32:35], 0 offen")
        A(f"buffer_load_dwordx2 v[{R+8}:{R+9}], v{4+p}, s[32:35], 0 offen offset:1152")
        A(f"buffer_load_dwordx2 v[{R+10}:{R+11}], v{4+p}, s[32:35], 0 offen offset:2304")
    A("s_lshl_b32 s49, s44, 8")
    A(f"s_sub_u32 s49, {XBASE + 2 * (2046 - 1536)}, s49")
    A("v_lshlrev_b32 v10, 2, v2")
    A("v_sub_u32 v10, s49, v10")
    A("s_waitcnt lgkmcnt(0)")
    for ch in range(4):
        for j in range(4):
            src = 52 + 2 * ch + j // 2
            if j & 1:
                A(f"s_and_b32 s{60 + 4*j + ch}, s{src}, 0xffff0000")
            else:
                A(f"s_lshl_b32 s{60 + 4*j + ch}, s{src}, 16")
    KT = 80
    VT = 100
    PR = 108
    PK = 140
    SM = 156
    for p in range(4):
        R = 16 + 14 * p
        A(f"s_waitcnt vmcnt({7 * (3 - p)})")
        A(f"v_mov_b32_dpp v{R+8}, v{R} wave_shr:1 row_mask:0xf bank_mask:0xf")
        A(f"v_mov_b32_dpp v{R+9}, v{R+1} wave_shr:1 row_mask:0xf bank_mask:0xf")
        A(f"v_mov_b32_dpp v{R+10}, v{R+2} wave_shr:1 row_mask:0xf bank_mask:0xf")
        A(f"v_mov_b32_dpp v{R+11}, v{R+3} wave_shr:1 row_mask:0xf bank_mask:0xf")
        toks = [R + 12, R + 8, R + 10, R, R + 2]
        for t in (3, 4):
            for h in range(2):
                unpack_lo(A, KT + 4 * t + 2 * h, toks[t] + h)
                unpack_hi(A, KT + 4 * t + 2 * h + 1, toks[t] + h)
        A(f"v_mov_b32_dpp v{R+12}, v{R+10} wave_shr:1 row_mask:0xf bank_mask:0xf")
        A(f"v_mov_b32_dpp v{R+13}, v{R+11} wave_shr:1 row_mask:0xf bank_mask:0xf")
        for t in (1, 2, 0):
            for h in range(2):
                unpack_lo(A, KT + 4 * t + 2 * h, toks[t] + h)
                unpack_hi(A, KT + 4 * t + 2 * h + 1, toks[t] + h)
        for t in range(2):
            for h in range(2):
                unpack_lo(A, VT + 4 * t + 2 * h, R + 4 + 2 * t + h)
                unpack_hi(A, VT + 4 * t + 2 * h + 1, R + 4 + 2 * t + h)
        for T in range(2):
            for t in range(4):
                for h in range(2):
                    d = PR + 16 * T + 4 * t + 2 * h
                    k = KT + 4 * (T + t) + 2 * h
                    w = 60 + 4 * (3 - t) + 2 * h
                    A(f"v_pk_mul_f32 v[{d}:{d+1}], v[{k}:{k+1}], s[{w}:{w+1}]")
        for i in range(16):
            A(f"v_cvt_pk_bf16_f32 v{PK+i}, v{PR+2*i}, v{PR+2*i+1}")
        for i in range(16):
            unpack_lo(A, PR + 2 * i, PK + i)
            unpack_hi(A, PR + 2 * i + 1, PK + i)
        for t in range(1, 4):
            for T in range(2):
                for h in range(2):
                    a = (PR + 16 * T + 2 * h) if t == 1 else (SM + 4 * T + 2 * h)
                    b = PR + 16 * T + 4 * t + 2 * h
                    d = SM + 4 * T + 2 * h
                    A(f"v_pk_add_f32 v[{d}:{d+1}], v[{a}:{a+1}], v[{b}:{b+1}]")
            for i in range(4):
                A(f"v_cvt_pk_bf16_f32 v{PK+i}, v{SM+2*i}, v{SM+2*i+1}")
            for i in range(4):
                unpack_lo(A, SM + 2 * i, PK + i)
                unpack_hi(A, SM + 2 * i + 1, PK + i)
        for i in range(4):
            A(f"v_pk_mul_f32 v[{SM+2*i}:{SM+2*i+1}], v[{SM+2*i}:{SM+2*i+1}], v[{VT+2*i}:{VT+2*i+1}]")
        for ch in range(4):
            A(f"v_cvt_pk_bf16_f32 v{PK+ch}, v{SM+4+ch}, v{SM+ch}")
        for ch in range(4):
            A(f"ds_write_b32 v10, v{PK+ch} offset:{1024 * (3 - p) + ch * XCH}")
        A("s_waitcnt lgkmcnt(0)")
        A("s_barrier")


def gen_k1_mfma(A):
    A("s_lshl_b32 s44, s31, 2")
    A("s_add_u32 s44, s44, s28")
    A("s_lshl_b32 s45, s44, 12")
    A("s_add_u32 s48, s10, s45")
    A("s_addc_u32 s49, s11, 0")
    A("s_mov_b32 s50, 4096")
    A("s_mov_b32 s51, 0x20000")
    A("s_lshl_b32 s45, s44, 1")
    A("s_and_b32 s46, s45, 0xfffffffc")
    A("s_add_u32 s52, s12, s46")
    A("s_addc_u32 s53, s13, 0")
    A("s_load_dword s54, s[52:53], 0")
    srd(A, 56, 14, ACT_BYTES, Y_OFF)
    A("v_lshlrev_b32 v3, 4, v2")
    C0 = 16
    for i in range(4):
        for c in range(3):
            r = C0 + 16 * c + 4 * i
            A(f"buffer_load_dwordx4 v[{r}:{r+3}], v3, s[48:51], 0 offen offset:{1024*i + 4*c}")
    A(f"s_mul_i32 s60, s28, {KCH}")
    A(f"s_mul_i32 s61, s28, {XCH}")
    A(f"s_add_u32 s61, s61, {XBASE}")
    A("v_add_u32 v4, s60, v3")
    A("v_mov_b32 v8, 0")
    A("v_mov_b32 v9, 0")
    A("v_mov_b32 v10, 0")
    A("v_mov_b32 v11, 0")
    A("v_lshlrev_b32 v5, 3, v2")
    A("v_add_u32 v5, s61, v5")
    A("ds_write_b64 v5, v[8:9] offset:4096")
    A("v_and_b32 v12, 15, v2")
    A("v_lshrrev_b32 v13, 4, v2")
    A("v_lshlrev_b32 v14, 3, v13")
    A("v_sub_u32 v6, v12, v14")
    A("v_add_u32 v6, 25, v6")
    A("v_and_b32 v7, 3, v6")
    A("v_sub_u32 v6, v6, v7")
    A("v_lshlrev_b32 v6, 1, v6")
    A(f"v_mul_u32_u24 v7, {KCOPY}, v7")
    A("v_add3_u32 v6, v6, v7, s60")
    A("v_lshlrev_b32 v7, 5, v12")
    A("v_lshl_add_u32 v7, v13, 4, v7")
    A(f"s_add_u32 s62, s61, {4112 - 3584}")
    A("v_sub_u32 v7, s62, v7")
    A("v_lshlrev_b32 v15, 5, v12")
    A("v_lshl_add_u32 v15, v13, 3, v15")
    A(f"s_add_u32 s62, s61, {2 * (2044 - 1792)}")
    A("v_sub_u32 v15, s62, v15")
    A("v_mul_u32_u24 v1, 18432, v12")
    A("v_lshl_add_u32 v1, v13, 3, v1")
    A("s_lshl_b32 s62, s44, 5")
    A("v_add_u32 v1, s62, v1")
    A("s_waitcnt lgkmcnt(0)")
    A("s_and_b32 s45, s44, 1")
    A("s_lshl_b32 s46, s54, 16")
    A("s_and_b32 s47, s54, 0xffff0000")
    A("s_cmp_eq_u32 s45, 0")
    A("s_cselect_b32 s54, s46, s47")
    O = 64
    for i in range(4):
        A(f"s_waitcnt vmcnt({3 * (3 - i)})")
        c0, c2, c4 = C0 + 4 * i, C0 + 16 + 4 * i, C0 + 32 + 4 * i
        o1, o3 = O + 8 * i, O + 8 * i + 4
        for k in range(4):
            A(f"v_alignbit_b32 v{o1+k}, v{c2+k}, v{c0+k}, 16")
        for k in range(4):
            A(f"v_alignbit_b32 v{o3+k}, v{c4+k}, v{c2+k}, 16")
        off = 32 + 1024 * i
        A(f"ds_write_b128 v4, v[{c0}:{c0+3}] offset:{off}")
        A(f"ds_write_b128 v4, v[{o1}:{o1+3}] offset:{off + KCOPY}")
        A(f"ds_write_b128 v4, v[{c2}:{c2+3}] offset:{off + 2*KCOPY}")
        A(f"ds_write_b128 v4, v[{o3}:{o3+3}] offset:{off + 3*KCOPY}")
    A("v_lshlrev_b32 v99, 16, v16")
    A("v_mov_b32 v96, 0")
    A("v_mov_b32 v97, 0")
    A("v_mov_b32 v98, 0")
    A("v_mov_b32 v100, 0")
    A("v_mov_b32 v101, 0")
    A("v_mov_b32 v102, 0")
    A("v_mov_b32 v103, v16")
    A("v_mov_b32 v104, 0")
    A("v_mov_b32 v105, 0")
    A("v_mov_b32 v106, v99")
    A("v_alignbit_b32 v107, v17, v16, 16")
    A("s_mov_b64 s[64:65], exec")
    A("s_mov_b64 exec, 1")
    for c in range(4):
        A(f"ds_write_b128 v4, v[8:11] offset:{c*KCOPY}")
    A(f"ds_write_b128 v4, v[8:11] offset:16")
    A(f"ds_write_b128 v4, v[96:99] offset:{16 + KCOPY}")
    A(f"ds_write_b128 v4, v[100:103] offset:{16 + 2*KCOPY}")
    A(f"ds_write_b128 v4, v[104:107] offset:{16 + 3*KCOPY}")
    A("s_mov_b64 exec, s[64:65]")
    A("s_waitcnt lgkmcnt(0)")
    ACC = 16
    BUF = [48, 112]
    TMP = 176
    first = set()
    stages = []
    for p in range(4):
        group = [1, 1, 2, 4][p]
        steps = []
        for r0 in range(0, 8, group):
            rs = list(range(r0, r0 + group))
            afr = [(r, i) for r in rs for i in range(8 - 2 * p)]
            bfr = [(r, m) for r in rs for m in (2 * p, 2 * p + 1)]
            mf = [(r, i, m) for r in rs for i in range(8 - 2 * p) for m in (2 * p, 2 * p + 1) if i + m <= 7]
            steps.append((afr, bfr, mf))
        stages.append(steps)

    def a_reads(buf, afr):
        out = []
        for n, (r, i) in enumerate(afr):
            reg = BUF[buf] + 4 * n
            off = 64 * r + 512 * i
            out.append(f"ds_read_b64 v[{reg}:{reg+1}], v6 offset:{off}")
            out.append(f"ds_read_b64 v[{reg+2}:{reg+3}], v6 offset:{off+8}")
        return out

    def b_reads(buf, bfr):
        out = []
        for n, (r, m) in enumerate(bfr):
            reg = BUF[buf] + 32 + 4 * n
            off = 512 * (7 - m) + 64 * r
            out.append(f"ds_read_b128 v[{reg}:{reg+3}], v7 offset:{off}")
        return out

    buf = 0
    for ln in a_reads(0, stages[0][0][0]):
        A(ln)
    for p in range(4):
        steps = stages[p]
        A("s_barrier")
        for ln in b_reads(buf, steps[0][1]):
            A(ln)
        for si, (afr, bfr, mf) in enumerate(steps):
            nxt = []
            if si + 1 < len(steps):
                nxt = b_reads(buf ^ 1, steps[si + 1][1]) + a_reads(buf ^ 1, steps[si + 1][0])
            elif p + 1 < 4:
                nxt = a_reads(buf ^ 1, stages[p + 1][0][0])
            A("s_waitcnt lgkmcnt(0)")
            per = -(-len(nxt) // len(mf)) if nxt else 0
            for k, (r, i, m) in enumerate(mf):
                t = i + m
                a = BUF[buf] + 4 * afr.index((r, i))
                b = BUF[buf] + 32 + 4 * bfr.index((r, m))
                c = "0" if t not in first else f"v[{ACC+4*t}:{ACC+4*t+3}]"
                first.add(t)
                A(f"v_mfma_f32_16x16x32_bf16 v[{ACC+4*t}:{ACC+4*t+3}], v[{a}:{a+3}], v[{b}:{b+3}], {c}")
                for _ in range(per):
                    if nxt:
                        A(nxt.pop(0))
            for ln in nxt:
                A(ln)
            buf ^= 1
        for k, t in enumerate((2 * p, 2 * p + 1)):
            A(f"ds_read_b64 v[{TMP+2*k}:{TMP+2*k+1}], v15 offset:{512*(7-t)}")
        A("s_nop 7")
        A("s_waitcnt lgkmcnt(0)")
        for k, t in enumerate((2 * p, 2 * p + 1)):
            x = TMP + 2 * k
            e = TMP + 8 + 8 * k
            acc = ACC + 4 * t
            unpack_hi(A, e + 0, x + 1)
            unpack_lo(A, e + 1, x + 1)
            unpack_hi(A, e + 2, x)
            unpack_lo(A, e + 3, x)
            for r in range(4):
                A(f"v_mul_f32 v{e+r}, s54, v{e+r}")
            A(f"v_cvt_pk_bf16_f32 v{x}, v{e}, v{e+1}")
            A(f"v_cvt_pk_bf16_f32 v{x+1}, v{e+2}, v{e+3}")
            A(f"v_cvt_pk_bf16_f32 v{TMP+4}, v{acc}, v{acc+1}")
            A(f"v_cvt_pk_bf16_f32 v{TMP+5}, v{acc+2}, v{acc+3}")
            unpack_lo(A, e + 0, x)
            unpack_hi(A, e + 1, x)
            unpack_lo(A, e + 2, x + 1)
            unpack_hi(A, e + 3, x + 1)
            unpack_lo(A, e + 4, TMP + 4)
            unpack_hi(A, e + 5, TMP + 4)
            unpack_lo(A, e + 6, TMP + 5)
            unpack_hi(A, e + 7, TMP + 5)
            for r in range(4):
                A(f"v_add_f32 v{e+r}, v{e+r}, v{e+4+r}")
            A(f"v_cvt_pk_bf16_f32 v{e+4}, v{e}, v{e+1}")
            A(f"v_cvt_pk_bf16_f32 v{e+5}, v{e+2}, v{e+3}")
            A(f"s_mov_b32 s62, {t * 16 * 18432}")
            A(f"buffer_store_dwordx2 v[{e+4}:{e+5}], v1, s[56:59], s62 offen")


def gen_k1_other(A, prefetch_w):
    A("s_waitcnt lgkmcnt(0)")
    A("s_cmp_ge_u32 s2, 198")
    A("s_cbranch_scc1 K1_PREF")
    srd(A, 32, 26, 576 * 6912)
    srd(A, 36, 24, 1152)
    srd(A, 40, 14, 6912, MOD_OFF if MOD_OFF else None)
    A("s_sub_u32 s44, s2, 144")
    A("s_lshl_b32 s44, s44, 7")
    A("v_lshrrev_b32 v3, 3, v0")
    A("v_and_b32 v4, 7, v0")
    A("v_mul_u32_u24 v5, 6912, v3")
    A("v_lshl_add_u32 v5, v4, 4, v5")
    A("v_lshlrev_b32 v6, 1, v3")
    for i in range(9):
        A(f"s_add_u32 s45, s44, {i * 64 * 6912}")
        A(f"buffer_load_dwordx4 v[{16+4*i}:{19+4*i}], v5, s[32:35], s45 offen")
    for i in range(9):
        A(f"buffer_load_ushort v{52+i}, v6, s[36:39], 0 offen offset:{128*i}")
    A("s_waitcnt vmcnt(0)")
    A("s_mov_b32 s46, 0xbfb8aa3b")
    for i in range(9):
        A(f"v_lshlrev_b32 v{52+i}, 16, v{52+i}")
        A(f"v_mul_f32 v{64+i}, s46, v{52+i}")
    for i in range(9):
        A(f"v_exp_f32 v{64+i}, v{64+i}")
    for i in range(9):
        A(f"v_add_f32 v{64+i}, 1.0, v{64+i}")
    for i in range(9):
        A(f"v_rcp_f32 v{64+i}, v{64+i}")
    for i in range(9):
        A(f"v_mul_f32 v{52+i}, v{52+i}, v{64+i}")
    for i in range(9):
        A(f"v_cvt_pk_bf16_f32 v{52+i}, v{52+i}, v{52+i}")
    for i in range(9):
        A(f"v_lshlrev_b32 v{52+i}, 16, v{52+i}")
    for i in range(9):
        for k in range(4):
            unpack_lo(A, 64 + 2 * k, 16 + 4 * i + k)
            unpack_hi(A, 65 + 2 * k, 16 + 4 * i + k)
        for k in range(8):
            if i == 0:
                A(f"v_mul_f32 v{72+k}, v{52+i}, v{64+k}")
            else:
                A(f"v_fmac_f32 v{72+k}, v{52+i}, v{64+k}")
    A("v_lshlrev_b32 v7, 5, v0")
    A("ds_write_b128 v7, v[72:75]")
    A("ds_write_b128 v7, v[76:79] offset:16")
    A("s_waitcnt lgkmcnt(0)")
    A("s_barrier")
    A("v_lshlrev_b32 v8, 2, v2")
    A("v_lshl_add_u32 v8, v1, 11, v8")
    for k in range(8):
        A(f"ds_read_b32 v{16+k}, v8 offset:{256*k}")
    A("s_waitcnt lgkmcnt(0)")
    for k in range(1, 8):
        A(f"v_add_f32 v16, v16, v{16+k}")
    A("v_lshlrev_b32 v9, 2, v0")
    A("ds_write_b32 v9, v16 offset:16384")
    A("s_waitcnt lgkmcnt(0)")
    A("s_barrier")
    A("s_cmp_lg_u32 s28, 0")
    A("s_cbranch_scc1 K1_PREF")
    A("v_lshlrev_b32 v8, 2, v2")
    for k in range(8):
        A(f"ds_read_b32 v{16+k}, v8 offset:{16384 + 256*k}")
    A("s_waitcnt lgkmcnt(0)")
    for k in range(1, 8):
        A(f"v_add_f32 v16, v16, v{16+k}")
    A("v_cvt_pk_bf16_f32 v16, v16, v16")
    A("v_lshlrev_b32 v8, 1, v2")
    A("buffer_store_short v16, v8, s[40:43], s44 offen")
    A("K1_PREF:")
    if not prefetch_w:
        return
    srd(A, 32, 16, 576 * 9216)
    srd(A, 36, 18, 576 * 9216)
    srd(A, 40, 20, 4608 * 1152)
    A("s_and_b32 s44, s2, 7")
    A("s_sub_u32 s45, s2, 144")
    A("s_lshr_b32 s45, s45, 3")
    A("s_mul_i32 s45, s45, 7")
    A("s_mov_b32 s46, 59652324")
    A("v_cmp_gt_u32 vcc, 504, v0")
    A("v_mul_hi_u32 v3, v0, s46")
    A("v_mul_u32_u24 v4, 72, v3")
    A("v_sub_u32 v4, v0, v4")
    A("v_add_u32 v3, s45, v3")
    A("v_mul_u32_u24 v5, 9216, v3")
    A("v_lshl_add_u32 v5, v4, 4, v5")
    A("v_mul_u32_u24 v6, 1152, v3")
    A("v_lshl_add_u32 v6, v4, 4, v6")
    A("v_mov_b32 v7, 0x7fffffff")
    A("v_cndmask_b32 v5, v7, v5, vcc")
    A("v_cndmask_b32 v6, v7, v6, vcc")
    A("s_mul_i32 s47, s44, 1152")
    A("s_mul_i32 s48, s44, 663552")
    n = 0
    for it in range(6):
        A(f"s_add_u32 s49, s47, {it * 98 * 9216}")
        A(f"buffer_load_dwordx4 v[{16+4*n}:{19+4*n}], v5, s[32:35], s49 offen"); n += 1
        A(f"buffer_load_dwordx4 v[{16+4*n}:{19+4*n}], v5, s[36:39], s49 offen"); n += 1
    for it in range(6):
        A(f"s_add_u32 s49, s48, {it * 98 * 1152}")
        A(f"buffer_load_dwordx4 v[{16+4*n}:{19+4*n}], v6, s[40:43], s49 offen"); n += 1
    A("s_waitcnt vmcnt(0)")
```

```python
from asmlib import *
from k1 import MOD_OFF, Y_OFF, H2F_OFF, X1B_OFF, ACT_BYTES, unpack_lo, unpack_hi

K2_LDS = 9216 + 2 * 1024


def rnd8(A, x, pk):
    for k in range(4):
        A(f"v_cvt_pk_bf16_f32 v{pk+k}, v{x+2*k}, v{x+2*k+1}")
    for k in range(4):
        unpack_lo(A, x + 2 * k, pk + k)
        unpack_hi(A, x + 2 * k + 1, pk + k)


def unpack8(A, d, s):
    for k in range(4):
        unpack_lo(A, d + 2 * k, s + k)
        unpack_hi(A, d + 2 * k + 1, s + k)


def rnd1(A, x):
    A(f"v_cvt_pk_bf16_f32 v{x}, v{x}, v{x}")
    A(f"v_lshlrev_b32 v{x}, 16, v{x}")


def ln_stats(A, X, S, lds_off, vred_w, vred_r, T):
    A(f"v_add_f32 v{S}, v{X}, v{X+1}")
    A(f"v_mul_f32 v{S+1}, v{X}, v{X}")
    A(f"v_fmac_f32 v{S+1}, v{X+1}, v{X+1}")
    for k in range(2, 8):
        A(f"v_add_f32 v{S}, v{S}, v{X+k}")
        A(f"v_fmac_f32 v{S+1}, v{X+k}, v{X+k}")
    A("s_nop 1")
    A(f"v_add_f32_dpp v{S}, v{S}, v{S} row_ror:8 row_mask:0xf bank_mask:0xf")
    A(f"v_add_f32_dpp v{S+1}, v{S+1}, v{S+1} row_ror:8 row_mask:0xf bank_mask:0xf")
    A(f"v_mov_b32 v{T}, v{S}")
    A(f"v_mov_b32 v{T+1}, v{S+1}")
    A("s_nop 1")
    A(f"v_permlane16_swap_b32 v{S}, v{T}")
    A(f"v_permlane16_swap_b32 v{S+1}, v{T+1}")
    A(f"v_add_f32 v{S}, v{S}, v{T}")
    A(f"v_add_f32 v{S+1}, v{S+1}, v{T+1}")
    A(f"v_mov_b32 v{T}, v{S}")
    A(f"v_mov_b32 v{T+1}, v{S+1}")
    A("s_nop 1")
    A(f"v_permlane32_swap_b32 v{S}, v{T}")
    A(f"v_permlane32_swap_b32 v{S+1}, v{T+1}")
    A(f"v_add_f32 v{S}, v{S}, v{T}")
    A(f"v_add_f32 v{S+1}, v{S+1}, v{T+1}")
    A(f"ds_write_b64 v{vred_w}, v[{S}:{S+1}] offset:{lds_off}")
    A("s_waitcnt lgkmcnt(0)")
    A("s_barrier")
    for k in range(4):
        A(f"ds_read_b128 v[{T+4*k}:{T+4*k+3}], v{vred_r} offset:{lds_off + 16*k}")
    A(f"ds_read_b64 v[{T+16}:{T+17}], v{vred_r} offset:{lds_off + 64}")
    A("s_waitcnt lgkmcnt(0)")
    A(f"v_add_f32 v{S}, v{T}, v{T+2}")
    A(f"v_add_f32 v{S+1}, v{T+1}, v{T+3}")
    for k in range(2, 9):
        A(f"v_add_f32 v{S}, v{S}, v{T+2*k}")
        A(f"v_add_f32 v{S+1}, v{S+1}, v{T+2*k+1}")
    A(f"v_mul_f32 v{S}, s40, v{S}")
    A(f"v_mul_f32 v{S+1}, s40, v{S+1}")
    A(f"v_fma_f32 v{S+1}, -v{S}, v{S}, v{S+1}")
    A(f"v_max_f32 v{S+1}, 0, v{S+1}")
    A(f"v_cvt_pk_bf16_f32 v{T}, v{S}, v{S+1}")
    unpack_lo(A, S, T)
    unpack_hi(A, S + 1, T)
    A(f"v_add_f32 v{S+1}, s41, v{S+1}")
    rnd1(A, S + 1)
    A(f"v_sqrt_f32 v{S+1}, v{S+1}")
    A("s_nop 0")
    rnd1(A, S + 1)
    A(f"v_rcp_f32 v{S+1}, v{S+1}")
    A("s_nop 0")


def ln_apply(A, X, O, S, C1, SH, pk):
    for k in range(8):
        A(f"v_sub_f32 v{O+k}, v{X+k}, v{S}")
    rnd8(A, O, pk)
    for k in range(8):
        A(f"v_mul_f32 v{O+k}, v{O+k}, v{S+1}")
    rnd8(A, O, pk)
    for k in range(8):
        A(f"v_mul_f32 v{O+k}, v{O+k}, v{C1+k}")
    rnd8(A, O, pk)
    for k in range(8):
        A(f"v_add_f32 v{O+k}, v{O+k}, v{SH+k}")


def gen_k2(A, name="ln_kernel"):
    kernel_header(A, name)
    A("s_cmp_ge_u32 s2, 256")
    A("s_cbranch_scc1 K2_END")
    A("s_load_dwordx2 s[4:5], s[0:1], 0")
    A("s_load_dwordx2 s[6:7], s[0:1], 112")
    A("v_and_b32 v1, 7, v0")
    A("v_lshrrev_b32 v2, 3, v0")
    A("v_lshrrev_b32 v3, 6, v0")
    A("v_and_b32 v4, 63, v0")
    A("v_readfirstlane_b32 s28, v3")
    A("v_mul_u32_u24 v5, 1152, v1")
    A("v_lshl_add_u32 v5, v2, 4, v5")
    A("s_mul_i32 s29, s2, 9216")
    A("v_lshlrev_b32 v6, 5, v0")
    A("s_lshr_b32 s30, s2, 1")
    A("s_mul_i32 s30, s30, 18432")
    A("s_and_b32 s31, s2, 1")
    A("s_lshl_b32 s32, s31, 4")
    A("s_add_u32 s32, s32, s30")
    A("s_lshl_b32 s33, s28, 10")
    A("s_mov_b32 m0, s33")
    A("v_lshlrev_b32 v7, 4, v2")
    A("s_waitcnt lgkmcnt(0)")
    srd(A, 8, 4, ACT_BYTES)
    srd(A, 12, 6, ACT_BYTES, Y_OFF)
    srd(A, 16, 6, 6912, MOD_OFF if MOD_OFF else None)
    srd(A, 20, 6, ACT_BYTES, H2F_OFF)
    srd(A, 24, 6, ACT_BYTES, X1B_OFF)
    A("buffer_load_dwordx4 v[16:19], v5, s[8:11], s29 offen")
    A("buffer_load_dwordx4 v6, s[12:15], s32 offen lds")
    A("s_mov_b32 s34, 3456")
    A("buffer_load_dwordx4 v[20:23], v7, s[16:19], 0 offen")
    A("buffer_load_dwordx4 v[24:27], v7, s[16:19], 0 offen offset:1152")
    A("buffer_load_dwordx4 v[28:31], v7, s[16:19], 0 offen offset:2304")
    A("buffer_load_dwordx4 v[32:35], v7, s[16:19], 0 offen offset:3456")
    A("buffer_load_dwordx4 v[36:39], v7, s[16:19], s34 offen offset:1152")
    A("s_mov_b32 s40, 0x3ae38e39")
    A("s_mov_b32 s41, 0x3727c5ac")
    A("v_lshlrev_b32 v9, 7, v1")
    A("v_lshl_add_u32 v8, v3, 3, v9")
    A("v_and_b32 v10, 3, v4")
    A("v_bfe_u32 v11, v4, 2, 2")
    A("v_lshrrev_b32 v12, 4, v4")
    A("v_lshlrev_b32 v13, 8, v12")
    A("v_lshl_add_u32 v13, v11, 4, v13")
    A("v_lshrrev_b32 v14, 1, v10")
    A("v_lshl_add_u32 v13, v14, 7, v13")
    A("v_and_b32 v14, 1, v10")
    A("v_lshl_add_u32 v13, v14, 3, v13")
    A("v_add_u32 v13, s33, v13")
    A("v_lshrrev_b32 v10, 2, v2")
    A("v_and_b32 v11, 3, v2")
    A("s_lshl_b32 s35, s31, 3")
    A("v_add_u32 v12, s35, v1")
    A("v_lshlrev_b32 v14, 10, v10")
    A("v_lshl_add_u32 v15, v11, 8, v14")
    A("v_lshl_add_u32 v15, v12, 4, v15")
    A("v_lshl_add_u32 v14, v12, 6, v14")
    A("v_lshl_add_u32 v14, v11, 4, v14")
    X = 40
    H = 48
    S = 56
    PK = 60
    T = 64
    M1 = 96
    M2 = 104
    Y = 112
    A("s_waitcnt vmcnt(6)")
    unpack8(A, X, 16)
    ln_stats(A, X, S, 9216, 8, 9, T)
    A("s_waitcnt vmcnt(3)")
    A(f"ds_read_b64_tr_b16 v[{Y+8}:{Y+9}], v13")
    A(f"ds_read_b64_tr_b16 v[{Y+10}:{Y+11}], v13 offset:64")
    unpack8(A, M1, 24)
    for k in range(8):
        A(f"v_add_f32 v{M1+k}, 1.0, v{M1+k}")
    rnd8(A, M1, PK)
    unpack8(A, M2, 20)
    ln_apply(A, X, H, S, M1, M2, PK)
    rnd8(A, H, PK)
    A("s_waitcnt lgkmcnt(0)")
    unpack8(A, Y, Y + 8)
    for k in range(8):
        A(f"v_mul_f32 v{H+k}, v{H+k}, v{Y+k}")
    rnd8(A, H, PK)
    A("s_waitcnt vmcnt(2)")
    unpack8(A, M1, 28)
    for k in range(8):
        A(f"v_mul_f32 v{H+k}, v{H+k}, v{M1+k}")
    rnd8(A, H, PK)
    for k in range(8):
        A(f"v_add_f32 v{X+k}, v{X+k}, v{H+k}")
    for k in range(4):
        A(f"v_cvt_pk_bf16_f32 v{16+k}, v{X+2*k}, v{X+2*k+1}")
    A("buffer_store_dwordx4 v[16:19], v14, s[24:27], s30 offen")
    unpack8(A, X, 16)
    ln_stats(A, X, S, 9216 + 1024, 8, 9, T)
    A("s_waitcnt vmcnt(1)")
    unpack8(A, M1, 36)
    for k in range(8):
        A(f"v_add_f32 v{M1+k}, 1.0, v{M1+k}")
    rnd8(A, M1, PK)
    unpack8(A, M2, 32)
    ln_apply(A, X, H, S, M1, M2, PK)
    for k in range(4):
        A(f"v_cvt_pk_bf16_f32 v{20+k}, v{H+2*k}, v{H+2*k+1}")
    A("buffer_store_dwordx4 v[20:23], v15, s[20:23], s30 offen")
    A("K2_END:")
    A("s_endpgm")
```

```python
from asmlib import *
from k1 import H2F_OFF, PART_OFF, ACT_BYTES, unpack_lo, unpack_hi

K3_LDS = 4 * 36864
NT = 243
AHEAD = 28

H_A = 0
WF_A = 144
ACC = 16
HH = 144
PA, PB, PC = 216, 220, 222
RD = 226
DA, DB, DC = 234, 235, 236
STV = 237
HLV = 238
TMP = 240


def tile_info(T):
    if T < 144:
        c, r = divmod(T, 36)
        return ('A', c, r // 2, r % 2)
    if T < 162:
        r = T - 144
        return ('B', 4, r // 2, r % 2)
    r = T - 162
    return ('C', r // 9, r % 9, 0)


def acc1(buf, mat, ft, tg):
    return ACC + 64 * buf + ((mat * 4 + ft) * 2 + tg) * 4


def acc2(b, nt, tg):
    return 80 + 32 * b + (nt * 2 + tg) * 4


def hh(tg, ks2):
    return HH + (ks2 * 2 + tg) * 4


def gen_k3(A, name="mlp_kernel", store_flags="sc0 sc1", round_gu=False, dma_flags=""):
    kernel_header(A, name)
    A("s_cmp_ge_u32 s2, 256")
    A("s_cbranch_scc1 K3_END")
    A("s_load_dwordx4 s[4:7], s[0:1], 56")
    A("s_load_dwordx2 s[8:9], s[0:1], 72")
    A("s_load_dwordx2 s[10:11], s[0:1], 112")
    A("v_lshrrev_b32 v1, 6, v0")
    A("v_and_b32 v2, 63, v0")
    A("v_readfirstlane_b32 s28, v1")
    A("s_and_b32 s29, s2, 7")
    A("s_lshl_b32 s29, s29, 1")
    A("s_bfe_u32 s30, s2, 0x10003")
    A("s_add_u32 s29, s29, s30")
    A("s_lshr_b32 s31, s2, 4")
    A("s_mul_i32 s32, s29, 288")
    A("s_lshl_b32 s33, s30, 5")
    A("s_add_u32 s33, s33, s32")
    A("s_xor_b32 s34, s30, 1")
    A("s_lshl_b32 s34, s34, 8")
    A("s_add_u32 s34, s34, s32")
    A("s_lshl_b32 s36, s33, 1")
    A("s_lshl_b32 s37, s34, 1")
    A("s_mul_i32 s38, s33, 1152")
    A("s_mul_i32 s39, s34, 1152")
    A("s_lshl_b32 s40, s28, 10")
    A("s_lshl_b32 s41, s31, 3")
    A("s_lshl_b32 s42, s28, 1")
    A("s_add_u32 s41, s41, s42")
    A("s_mul_i32 s41, s41, 18432")
    A(f"s_mul_i32 s42, s29, {ACT_BYTES}")
    A("s_add_u32 s42, s42, s41")
    A("s_mov_b32 s43, 0xbfb8aa3b")
    A("v_lshrrev_b32 v3, 3, v2")
    A("s_lshl_b32 s44, s28, 3")
    A("v_add_u32 v3, s44, v3")
    A("v_and_b32 v4, 7, v2")
    A("v_and_b32 v5, 2, v3")
    A("v_lshrrev_b32 v6, 1, v3")
    A("v_and_b32 v6, 4, v6")
    A("v_or_b32 v5, v5, v6")
    A("v_xor_b32 v5, v5, v4")
    A("v_mul_u32_u24 v6, 9216, v3")
    A(f"v_lshl_add_u32 v{DA}, v5, 4, v6")
    A("v_bfe_u32 v5, v3, 1, 1")
    A("v_and_b32 v6, 4, v3")
    A("v_or_b32 v5, v5, v6")
    A("v_xor_b32 v5, v5, v4")
    A("v_mul_u32_u24 v6, 1152, v3")
    A(f"v_lshl_add_u32 v{DC}, v5, 4, v6")
    A("v_lshrrev_b32 v3, 2, v2")
    A("s_lshl_b32 s44, s28, 4")
    A("v_add_u32 v3, s44, v3")
    A("v_and_b32 v4, 3, v2")
    A("v_lshrrev_b32 v5, 2, v3")
    A("v_and_b32 v5, 2, v5")
    A("v_xor_b32 v5, v5, v4")
    A("v_mul_u32_u24 v6, 9216, v3")
    A(f"v_lshl_add_u32 v{DB}, v5, 4, v6")
    A(f"v_lshlrev_b32 v{HLV}, 4, v2")
    A("s_waitcnt lgkmcnt(0)")
    srd(A, 12, 4, 576 * 9216)
    srd(A, 16, 6, 576 * 9216)
    srd(A, 20, 8, 4608 * 1152)
    srd(A, 24, 10, ACT_BYTES, H2F_OFF)
    srd(A, 48, 10, 16 * ACT_BYTES, PART_OFF)

    vm = {'n': 0, 'done': -1}
    dma_idx = {}
    h_idx = {}

    def vm_issue():
        vm['n'] += 1
        return vm['n'] - 1

    def vm_wait(idx):
        if idx <= vm['done']:
            return None
        cnt = vm['n'] - 1 - idx
        assert cnt <= 63
        vm['done'] = idx
        return f"s_waitcnt vmcnt({cnt})"

    def dma_instrs(T):
        ty, a, b, m = tile_info(T)
        lds = ((T // 9) % 4) * 36864 + (T % 9) * 4096
        out = [f"s_add_u32 m0, s40, {lds}"]
        if ty == 'A':
            out.append(f"s_add_u32 s45, s36, {b * 32 * 9216 + a * 128}")
            out.append(f"buffer_load_dwordx4 v{DA}, s[{12 + 4*m}:{15 + 4*m}], s45 offen {dma_flags} lds")
        elif ty == 'B':
            out.append(f"s_add_u32 s45, s37, {b * 64 * 9216}")
            out.append(f"buffer_load_dwordx4 v{DB}, s[{12 + 4*m}:{15 + 4*m}], s45 offen {dma_flags} lds")
        else:
            if b < 8:
                out.append(f"s_add_u32 s45, s38, {b * 32 * 1152 + a * 128}")
            else:
                out.append(f"s_add_u32 s45, s39, {a * 128}")
            out.append(f"buffer_load_dwordx4 v{DC}, s[20:23], s45 offen {dma_flags} lds")
        return out

    def emit_dma(T):
        for ln in dma_instrs(T):
            A(ln)
        dma_idx[T] = vm_issue()

    def emit_h(ks):
        for tg in range(2):
            r = H_A + (tg * 18 + ks) * 4
            A(f"s_add_u32 s46, s41, {(tg * 18 + ks) * 1024}")
            A(f"buffer_load_dwordx4 a[{r}:{r+3}], v{HLV}, s[24:27], s46 offen")
            h_idx[(tg, ks)] = vm_issue()

    for T in range(0, 9):
        emit_dma(T)
    for ks in range(0, 5):
        emit_h(ks)
    A("v_lshrrev_b32 v3, 4, v2")
    A("v_bfe_u32 v4, v2, 2, 2")
    A("v_and_b32 v5, 3, v2")
    A("v_lshl_add_u32 v6, v3, 3, v4")
    A("v_lshrrev_b32 v7, 1, v5")
    A("v_and_b32 v8, 1, v5")
    A("v_and_b32 v9, 2, v6")
    A("v_lshrrev_b32 v10, 1, v6")
    A("v_and_b32 v10, 4, v10")
    A("v_or_b32 v9, v9, v10")
    A("v_lshlrev_b32 v11, 7, v6")
    A("v_lshl_add_u32 v11, v8, 3, v11")
    for ft in range(4):
        A(f"v_add_u32 v12, {2*ft}, v7")
        A("v_xor_b32 v12, v12, v9")
        A(f"v_lshl_add_u32 v{PA+ft}, v12, 4, v11")
    A("v_lshrrev_b32 v9, 2, v6")
    A("v_and_b32 v9, 2, v9")
    A("v_lshlrev_b32 v11, 6, v6")
    A("v_lshl_add_u32 v11, v8, 3, v11")
    for ft in range(2):
        A(f"v_add_u32 v12, {2*ft}, v7")
        A("v_xor_b32 v12, v12, v9")
        A(f"v_lshl_add_u32 v{PB+ft}, v12, 4, v11")
    A("v_lshl_add_u32 v6, v3, 2, v4")
    A("v_bfe_u32 v9, v6, 1, 1")
    A("v_and_b32 v10, 4, v6")
    A("v_or_b32 v9, v9, v10")
    A("v_lshlrev_b32 v11, 7, v6")
    for nt in range(4):
        A(f"v_add_u32 v12, {4*(nt>>1)}, v5")
        A("v_xor_b32 v12, v12, v9")
        A(f"v_lshl_add_u32 v13, v12, 4, v11")
        A(f"v_xor_b32 v14, {nt & 1}, v8")
        A(f"v_lshl_add_u32 v{PC+nt}, v14, 3, v13")
    A("v_and_b32 v6, 15, v2")
    A("v_lshlrev_b32 v6, 6, v6")
    A(f"v_lshl_add_u32 v{STV}, v3, 4, v6")
    for T in range(9, 18):
        emit_dma(T)
    for ks in range(5, 10):
        emit_h(ks)
    for T in range(18, AHEAD):
        emit_dma(T)
    for ks in range(10, 18):
        emit_h(ks)

    def rd_setup(stage):
        ty = tile_info(stage * 9)[0]
        base = (stage % 4) * 36864
        src = {'A': [PA, PA + 1, PA + 2, PA + 3], 'B': [PB, PB + 1], 'C': [PC, PC + 1, PC + 2, PC + 3]}[ty]
        return [f"v_add_u32 v{RD + 4*(stage & 1) + i}, {base}, v{s}" for i, s in enumerate(src)]

    def reads(T):
        ty = tile_info(T)[0]
        st = T // 9
        rd = RD + 4 * (st & 1)
        off = (T % 9) * 4096
        w = WF_A + 16 * (T % 3)
        out = []
        for f in range(4):
            for h in range(2):
                if ty == 'A':
                    a, o = rd + f, off + 512 * h
                elif ty == 'B':
                    a, o = rd + (f & 1), off + 2048 * (f >> 1) + 256 * h
                else:
                    a, o = rd + f, off + 2048 * h
                out.append(f"ds_read_b64_tr_b16 a[{w+4*f+2*h}:{w+4*f+2*h+1}], v{a} offset:{o}")
        return out

    def mfmas(T):
        ty, a, b, m = tile_info(T)
        w = WF_A + 16 * (T % 3)
        out = []
        for f in range(4):
            for tg in range(2):
                if ty == 'A':
                    d = acc1(a & 1, m, f, tg)
                    bop = f"a[{H_A + (tg*18 + b)*4}:{H_A + (tg*18 + b)*4 + 3}]"
                    first = (b == 0)
                elif ty == 'B':
                    d = acc1(0, m, f & 1, tg)
                    ks = 2 * b + (f >> 1)
                    bop = f"a[{H_A + (tg*18 + ks)*4}:{H_A + (tg*18 + ks)*4 + 3}]"
                    first = (ks == 0)
                else:
                    d = acc2(a & 1, f, tg)
                    bop = f"v[{hh(tg, b)}:{hh(tg, b)+3}]"
                    first = (b == 0)
                c = "0" if first else f"v[{d}:{d+3}]"
                out.append(f"v_mfma_f32_16x16x32_bf16 v[{d}:{d+3}], a[{w+4*f}:{w+4*f+3}], {bop}, {c}")
        return out

    def epi1(c):
        out = []
        nft = 4 if c < 4 else 2
        buf = c & 1
        for ft in range(nft):
            for tg in range(2):
                G = acc1(buf, 0, ft, tg)
                U = acc1(buf, 1, ft, tg)
                d = hh(tg, 2 * c + (ft >> 1)) + 2 * (ft & 1)
                if round_gu:
                    for e in range(4):
                        out.append(f"v_cvt_pk_bf16_f32 v{U+e}, v{G+e}, v{U+e}")
                    for e in range(4):
                        out.append(f"v_lshlrev_b32 v{G+e}, 16, v{U+e}")
                    for e in range(4):
                        out.append(f"v_and_b32 v{U+e}, 0xffff0000, v{U+e}")
                for e in range(4):
                    out.append(f"v_mul_f32 v{G+e}, s43, v{G+e}")
                for e in range(4):
                    out.append(f"v_exp_f32 v{G+e}, v{G+e}")
                for e in range(4):
                    out.append(f"v_add_f32 v{G+e}, 1.0, v{G+e}")
                for e in range(4):
                    out.append(f"v_rcp_f32 v{G+e}, v{G+e}")
                if round_gu:
                    out.append(f"v_cvt_pk_bf16_f32 v{d}, v{G}, v{G+1}")
                    out.append(f"v_cvt_pk_bf16_f32 v{d+1}, v{G+2}, v{G+3}")
                    out.append(f"v_lshlrev_b32 v{G}, 16, v{d}")
                    out.append(f"v_and_b32 v{G+1}, 0xffff0000, v{d}")
                    out.append(f"v_lshlrev_b32 v{G+2}, 16, v{d+1}")
                    out.append(f"v_and_b32 v{G+3}, 0xffff0000, v{d+1}")
                for e in range(4):
                    out.append(f"v_mul_f32 v{G+e}, v{G+e}, v{U+e}")
                out.append(f"v_cvt_pk_bf16_f32 v{d}, v{G}, v{G+1}")
                out.append(f"v_cvt_pk_bf16_f32 v{d+1}, v{G+2}, v{G+3}")
        return out

    def epi2(nc):
        out = []
        b = nc & 1
        pk = 16 + 16 * b
        for tg in range(2):
            for P in range(2):
                r = pk + (tg * 2 + P) * 4
                for k in range(2):
                    a = acc2(b, 2 * P + k, tg)
                    out.append(f"v_cvt_pk_bf16_f32 v{r+2*k}, v{a}, v{a+1}")
                    out.append(f"v_cvt_pk_bf16_f32 v{r+2*k+1}, v{a+2}, v{a+3}")
            out.append(f"s_add_u32 s47, s42, {tg * 18432 + nc * 2048}")
            for P in range(2):
                r = pk + (tg * 2 + P) * 4
                out.append(('st', f"buffer_store_dwordx4 v[{r}:{r+3}], v{STV}, s[48:51], s47 offen offset:{1024*P} {store_flags}"))
        return out

    for ln in rd_setup(0):
        A(ln)
    w = vm_wait(dma_idx[8])
    A(w)
    A("s_barrier")
    for ln in reads(0) + reads(1):
        A(ln)

    queue = []
    for T in range(NT):
        ty, a, b, m = tile_info(T)
        if ty in ('A', 'B') and T % 36 == 1 and T >= 36:
            queue += epi1(T // 36 - 1)
            qdead = T + 30 if ty == 'A' else T + 16
        if T == 163:
            queue += epi1(4)
            qdead = 162 + 7
        if ty == 'C' and b == 1 and a >= 1:
            queue += epi2(a - 1)
            qdead = T + 6
        mf = mfmas(T)
        gaps = [[] for _ in range(8)]
        pre = []
        pre.append(f"s_waitcnt lgkmcnt({8 if T + 1 < NT else 0})")
        if ty == 'A' and a == 0:
            w = vm_wait(h_idx[(1, b)])
            if w:
                pre.append(w)
        is_bar = (T % 9 == 7) and (T + 2 < NT)
        g0 = 0
        fixed = []
        rds = reads(T + 2) if T + 2 < NT else []
        if is_bar:
            g0 = 1
        slots = list(range(g0, 8))
        for i, r in enumerate(rds):
            gaps[slots[i * len(slots) // len(rds)]].append(r)
        if T % 9 == 3 and (T // 9 + 1) * 9 < NT:
            for i, ln in enumerate(rd_setup(T // 9 + 1)):
                gaps[2 * i].append(ln)
        if queue:
            left = max(1, qdead - T + 1)
            nq = -(-len(queue) // left)
        else:
            nq = 0
        qitems = [queue.pop(0) for _ in range(min(nq, len(queue)))]
        for ln in pre:
            A(ln)
        dma_gap = 3 if not is_bar else 4
        for g in range(8):
            A(mf[g])
            if g == 0 and is_bar:
                st1 = T // 9 + 1
                w = vm_wait(dma_idx[min(st1 * 9 + 8, NT - 1)])
                if w:
                    A(w)
                A("s_barrier")
            for ln in gaps[g]:
                A(ln)
            if g == dma_gap and T + AHEAD < NT:
                emit_dma(T + AHEAD)
            lo = g * len(qitems) // 8
            hi = (g + 1) * len(qitems) // 8
            for it in qitems[lo:hi]:
                if isinstance(it, tuple):
                    A(it[1])
                    vm_issue()
                else:
                    A(it)
    assert not queue
    A("s_nop 7")
    for it in epi2(8):
        A(it[1] if isinstance(it, tuple) else it)
    A("K3_END:")
    A("s_endpgm")
```

```python
from asmlib import *
from k1 import MOD_OFF, X1B_OFF, PART_OFF, ACT_BYTES, unpack_lo, unpack_hi
from k2 import rnd8, unpack8

def gen_k4(A, name="red_kernel"):
    kernel_header(A, name)
    A("s_cmp_ge_u32 s2, 576")
    A("s_cbranch_scc1 K4_END")
    A("s_load_dwordx2 s[4:5], s[0:1], 96")
    A("s_load_dwordx2 s[6:7], s[0:1], 112")
    A("v_lshrrev_b32 v1, 6, v0")
    A("v_lshlrev_b32 v2, 4, v0")
    A("v_readfirstlane_b32 s28, v1")
    A("s_lshl_b32 s29, s2, 12")
    A("s_lshl_b32 s30, s2, 2")
    A("s_add_u32 s30, s30, s28")
    A("s_mul_hi_u32 s31, s30, 238609295")
    A("s_mul_i32 s32, s31, 18")
    A("s_sub_u32 s32, s30, s32")
    A("v_and_b32 v3, 63, v0")
    A("v_lshrrev_b32 v4, 2, v3")
    A("v_and_b32 v5, 3, v3")
    A("v_lshlrev_b32 v6, 4, v5")
    A("v_mul_u32_u24 v7, 1152, v4")
    A("v_add_u32 v7, v7, v6")
    A("s_lshl_b32 s33, s32, 6")
    A("s_mul_i32 s34, s31, 18432")
    A("s_add_u32 s34, s34, s33")
    A(f"s_add_u32 s33, s33, {5*1152}")
    A("v_and_b32 v8, 1, v5")
    A("v_cmp_eq_u32 vcc, 1, v8")
    A("s_waitcnt lgkmcnt(0)")
    srd(A, 8, 6, 16 * ACT_BYTES, PART_OFF)
    srd(A, 12, 6, ACT_BYTES, X1B_OFF)
    srd(A, 16, 6, 6912, MOD_OFF if MOD_OFF else None)
    srd(A, 20, 4, ACT_BYTES)
    for j in range(16):
        A(f"s_add_u32 s35, s29, {j * ACT_BYTES}")
        A(f"buffer_load_dwordx4 v[{16+4*j}:{19+4*j}], v2, s[8:11], s35 offen")
    A("buffer_load_dwordx4 v[80:83], v2, s[12:15], s29 offen")
    A("buffer_load_dwordx4 v[84:87], v6, s[16:19], s33 offen")
    ACC, U, PK = 88, 96, 104
    for j in range(16):
        A(f"s_waitcnt vmcnt({17 - j})")
        if j == 0:
            unpack8(A, ACC, 16)
        else:
            unpack8(A, U, 16 + 4 * j)
            for k in range(4):
                A(f"v_pk_add_f32 v[{ACC+2*k}:{ACC+2*k+1}], v[{ACC+2*k}:{ACC+2*k+1}], v[{U+2*k}:{U+2*k+1}]")
    for k in range(4):
        A(f"v_cvt_pk_bf16_f32 v{PK+k}, v{ACC+2*k}, v{ACC+2*k+1}")
    A(f"v_cndmask_b32 v{PK+4}, v{PK}, v{PK+2}, vcc")
    A(f"v_cndmask_b32 v{PK+5}, v{PK+1}, v{PK+3}, vcc")
    A(f"v_cndmask_b32 v{PK+6}, v{PK+2}, v{PK}, vcc")
    A(f"v_cndmask_b32 v{PK+7}, v{PK+3}, v{PK+1}, vcc")
    unpack8(A, ACC, PK + 4)
    A("s_waitcnt vmcnt(0)")
    unpack8(A, U, 84)
    for k in range(8):
        A(f"v_mul_f32 v{ACC+k}, v{ACC+k}, v{U+k}")
    rnd8(A, ACC, PK)
    unpack8(A, U, 80)
    for k in range(8):
        A(f"v_add_f32 v{ACC+k}, v{ACC+k}, v{U+k}")
    for k in range(4):
        A(f"v_cvt_pk_bf16_f32 v{PK+k}, v{ACC+2*k}, v{ACC+2*k+1}")
    A(f"buffer_store_dwordx4 v[{PK}:{PK+3}], v7, s[20:23], s34 offen")
    A("K4_END:")
    A("s_endpgm")
```

```python
import sys
sys.path.insert(0, "dev")
from asmlib import *
import k1, k2, k3, k4

HEADER = open("adaLN_cond__ssm_conv_h3__glu_gated_glu__prompt.s.ref").read().split("; Override launch")[0]

def build(opts=None):
    o = dict(prefetch_w=True, store_flags="sc0 sc1", round_gu=False)
    o.update(opts or {})
    A = Asm()
    k1.gen_k1(A, prefetch_w=o['prefetch_w'])
    k2.gen_k2(A)
    k3.gen_k3(A, store_flags=o['store_flags'], round_gu=o['round_gu'])
    k4.gen_k4(A)
    txt = HEADER
    txt += f"; @launch kernel=conv_kernel grid=(256,1,1) block=(512,1,1) lds={k1.K1_LDS}\n"
    txt += f"; @launch kernel=ln_kernel grid=(256,1,1) block=(576,1,1) lds={k2.K2_LDS}\n"
    txt += f"; @launch kernel=mlp_kernel grid=(256,1,1) block=(256,1,1) lds={k3.K3_LDS}\n"
    txt += f"; @launch kernel=red_kernel grid=(576,1,1) block=(256,1,1) lds=0\n"
    txt += '.amdgcn_target "amdgcn-amd-amdhsa--gfx950"\n.text\n'
    txt += A.text()
    txt += '.section .rodata,"a"\n'
    for name, v, s, acc in [("conv_kernel", 256, 80, 256), ("ln_kernel", 128, 48, 128), ("mlp_kernel", 448, 56, 256), ("red_kernel", 112, 40, 112)]:
        txt += ".p2align 6\n" + kernel_desc(name, v, s, acc)
    return txt

if __name__ == "__main__":
    out = sys.argv[1] if len(sys.argv) > 1 else "adaLN_cond__ssm_conv_h3__glu_gated_glu__prompt.s"
    opts = eval(sys.argv[2]) if len(sys.argv) > 2 else {}
    open(out, "w").write(build(opts))
    print("wrote", out)
```

```python
class Asm:
    def __init__(self):
        self.lines = []
        self._lbl = 0

    def __call__(self, s):
        for ln in s.split("\n"):
            ln = ln.strip()
            if ln:
                self.lines.append(ln if ln.endswith(":") else "    " + ln)

    def c(self, s):
        self.lines.append("    ; " + s)

    def label(self, base="L"):
        self._lbl += 1
        return f"{base}_{self._lbl}"

    TS = False
    TS_OFF = 0x8000000

    def ts_begin(self):
        if not self.TS:
            return
        self("s_memrealtime s[90:91]")
        self("s_memtime s[88:89]")
        self("s_load_dwordx2 s[92:93], s[0:1], 112")
        self("v_lshrrev_b32 v1, 6, v0")
        self("s_waitcnt lgkmcnt(0)")
        self("v_readfirstlane_b32 s94, v1")

    def ts_mark(self, slot):
        if not self.TS:
            return
        self("s_memrealtime s[100:101]")
        self("s_waitcnt lgkmcnt(0)")
        self(f"s_mov_b32 s{96+slot}, s100")

    def ts_end(self, kidx):
        if not self.TS:
            return
        self("s_waitcnt vmcnt(0) lgkmcnt(0)")
        self("s_memrealtime s[100:101]")
        self("s_memtime s[82:83]")
        self(f"s_add_u32 s84, s92, {self.TS_OFF + kidx * 0x40000}")
        self("s_addc_u32 s85, s93, 0")
        self("s_mov_b32 s86, 0x40000")
        self("s_mov_b32 s87, 0x20000")
        self("s_lshl_b32 s95, s2, 4")
        self("s_add_u32 s95, s95, s94")
        self("s_lshl_b32 s95, s95, 5")
        self("s_waitcnt lgkmcnt(0)")
        self("s_mov_b64 exec, 1")
        self("v_mov_b32 v0, s90")
        self("v_mov_b32 v1, s100")
        self("v_mov_b32 v2, s96")
        self("v_mov_b32 v3, s97")
        self("v_mov_b32 v4, s98")
        self("v_mov_b32 v5, s99")
        self("s_sub_u32 s82, s82, s88")
        self("v_mov_b32 v6, s82")
        self("s_getreg_b32 s83, hwreg(HW_REG_XCC_ID)")
        self("v_mov_b32 v7, s83")
        self("v_mov_b32 v8, 0")
        self("buffer_store_dwordx4 v[0:3], v8, s[84:87], s95 offen")
        self("buffer_store_dwordx4 v[4:7], v8, s[84:87], s95 offen offset:16")

    def text(self):
        return "\n".join(self.lines) + "\n"


def vr(b, n=1):
    return f"v{b}" if n == 1 else f"v[{b}:{b+n-1}]"


def ar(b, n=1):
    return f"a{b}" if n == 1 else f"a[{b}:{b+n-1}]"


def sr(b, n=1):
    return f"s{b}" if n == 1 else f"s[{b}:{b+n-1}]"


def srd(A, d, base, nbytes, extra_off=None):
    if extra_off:
        A(f"s_add_u32 s{d}, s{base}, {extra_off}")
        A(f"s_addc_u32 s{d+1}, s{base+1}, 0")
    else:
        A(f"s_mov_b32 s{d}, s{base}")
        A(f"s_mov_b32 s{d+1}, s{base+1}")
    A(f"s_mov_b32 s{d+2}, {nbytes}")
    A(f"s_mov_b32 s{d+3}, 0x20000")


def kernel_header(A, name):
    A(f".globl {name}")
    A(".p2align 8")
    A(f".type {name},@function")
    A(f"{name}:")


def kernel_desc(name, vgpr, sgpr, accum):
    return f""".amdhsa_kernel {name}
  .amdhsa_next_free_vgpr {vgpr}
  .amdhsa_next_free_sgpr {sgpr}
  .amdhsa_accum_offset {accum}
  .amdhsa_group_segment_fixed_size 0
  .amdhsa_kernarg_size 120
  .amdhsa_user_sgpr_count 2
  .amdhsa_user_sgpr_kernarg_segment_ptr 1
  .amdhsa_system_sgpr_workgroup_id_x 1
  .amdhsa_float_denorm_mode_32 3
  .amdhsa_float_denorm_mode_16_64 3
.end_amdhsa_kernel
"""
```

```python
from asmlib import *

MOD_OFF = 0
Y_OFF = 0x10000
H2F_OFF = 0x250000
X1B_OFF = 0x490000
LN1_OFF = 0x6D0000
PART_OFF = 0x910000
ACT_BYTES = 2359296

KCOPY = 4416
KCH = 4 * KCOPY
XBASE = 4 * KCH
XCH = 4608
K1_LDS = XBASE + 4 * XCH
K1_ACCUM = 128


def unpack_lo(A, d, s):
    A(f"v_lshlrev_b32 v{d}, 16, v{s}")


def unpack_hi(A, d, s):
    A(f"v_and_b32 v{d}, 0xffff0000, v{s}")


def rnd(A, d, s):
    A(f"v_cvt_pk_bf16_f32 v{d}, 0, v{s}")


EXP = {}


def gen_k1(A, name="conv_kernel", prefetch_w=True):
    kernel_header(A, name)
    A("s_cmp_ge_u32 s2, 256")
    A("s_cbranch_scc1 K1_END")
    A.ts_begin()
    A("s_load_dwordx8 s[4:11], s[0:1], 8")
    A("s_load_dwordx2 s[12:13], s[0:1], 40")
    A("s_load_dwordx2 s[14:15], s[0:1], 112")
    A("s_load_dwordx4 s[16:19], s[0:1], 56")
    A("s_load_dwordx2 s[20:21], s[0:1], 72")
    A("s_load_dwordx2 s[22:23], s[0:1], 0")
    A("s_load_dwordx4 s[24:27], s[0:1], 80")
    A("s_getpc_b64 s[76:77]")
    A("s_mov_b32 s78, CODE_PF_BEGIN-conv_kernel")
    A("s_mov_b32 s79, 0x20000")
    A("v_lshlrev_b32 v3, 1, v0")
    A("s_lshr_b32 s3, s2, 3")
    A("s_lshl_b32 s3, s3, 10")
    A("buffer_load_ushort a0, v3, s[76:79], s3 offen")
    A("v_lshrrev_b32 v1, 6, v0")
    A("v_and_b32 v2, 63, v0")
    A("v_readfirstlane_b32 s28, v1")
    A("v_lshrrev_b32 v3, 3, v0")
    A("v_mul_u32_u24 v3, 1152, v3")
    A("v_and_b32 v4, 7, v0")
    A("v_lshl_add_u32 v3, v4, 4, v3")
    A("s_and_b32 s29, s2, 7")
    A("s_lshr_b32 s30, s2, 3")
    A("s_cmp_ge_u32 s2, 144")
    A("s_cbranch_scc1 K1_OTHER")
    A("s_lshl_b32 s31, s29, 4")
    A("s_add_u32 s31, s31, s30")
    A("s_sub_u32 s40, s30, 16")
    A("s_lshl_b32 s40, s40, 3")
    A("s_add_u32 s40, s40, s29")
    A("s_add_u32 s40, s40, 128")
    A("s_cmp_lt_u32 s30, 16")
    A("s_cselect_b32 s31, s31, s40")
    A("s_lshl_b32 s41, s31, 3")
    A("s_and_b32 s42, s31, 15")
    A("s_mul_i32 s42, s42, 147456")
    A("s_lshr_b32 s43, s31, 4")
    A("s_lshl_b32 s43, s43, 7")
    A("s_add_u32 s42, s42, s43")
    A("s_add_u32 s43, s42, 73728")
    A("s_waitcnt lgkmcnt(0)")
    srd(A, 32, 4, ACT_BYTES)
    srd(A, 36, 6, ACT_BYTES)
    A("s_cmp_ge_u32 s28, 4")
    A("s_cbranch_scc1 K1_LOADER")
    gen_k1_mfma(A)
    A.ts_end(0)
    A("s_endpgm")
    A("K1_LOADER:")
    gen_k1_loader(A)
    A.ts_end(0)
    A("s_endpgm")
    A("K1_OTHER:")
    gen_k1_other(A, prefetch_w)
    A.ts_end(0)
    A("K1_END:")
    A("s_endpgm")


def gen_k1_loader(A):
    A(f"s_setprio {EXP.get('lprio', 2)}")
    A("s_sub_u32 s44, s28, 4")
    A("s_mul_i32 s48, s44, 147456")
    A("s_add_u32 s48, s48, s41")
    A("v_mul_u32_u24 v3, 2304, v2")
    A("v_add_u32 v3, s48, v3")
    for p in range(4):
        A(f"s_add_u32 s50, s48, {(512 * p - 3) * 1152 & 0xffffffff}")
        A(f"v_mov_b32 v{4 + p}, s50")
        A(f"s_mov_b32 s{80 - 4 + p}, {512 * p * 1152}")

    def issue(p):
        R = 16 + 14 * (p % 3)
        so = f"s{76 + p}"
        return [[f"buffer_load_dwordx2 v[{R}:{R+1}], v3, s[32:35], {so} offen",
                 f"buffer_load_dwordx2 v[{R+12}:{R+13}], v{4+p}, s[32:35], 0 offen",
                 f"buffer_load_dwordx2 v[{R+8}:{R+9}], v{4+p}, s[32:35], 0 offen offset:1152",
                 f"buffer_load_dwordx2 v[{R+10}:{R+11}], v{4+p}, s[32:35], 0 offen offset:2304"],
                [f"buffer_load_dwordx2 v[{R+2}:{R+3}], v3, s[32:35], {so} offen offset:1152"],
                [f"buffer_load_dwordx2 v[{R+4}:{R+5}], v3, s[36:39], {so} offen"],
                [f"buffer_load_dwordx2 v[{R+6}:{R+7}], v3, s[36:39], {so} offen offset:1152"]]

    A("s_barrier")
    for g in issue(0):
        for ln in g:
            A(ln)
    A("s_lshl_b32 s45, s31, 5")
    A("s_add_u32 s46, s8, s45")
    A("s_addc_u32 s47, s9, 0")
    A("s_load_dwordx8 s[52:59], s[46:47], 0")
    A("s_lshl_b32 s49, s44, 8")
    A(f"s_sub_u32 s49, {XBASE + 2 * (2046 - 1536)}, s49")
    A("v_lshlrev_b32 v10, 2, v2")
    A("v_sub_u32 v10, s49, v10")
    A("s_waitcnt lgkmcnt(0)")
    for ch in range(4):
        for j in range(4):
            src = 52 + 2 * ch + j // 2
            if j & 1:
                A(f"s_and_b32 s{60 + 4*j + ch}, s{src}, 0xffff0000")
            else:
                A(f"s_lshl_b32 s{60 + 4*j + ch}, s{src}, 16")
    KT = 60
    VT = 80
    PR = 88
    PK = 120
    AH = EXP.get('ahead', 1)
    issued = [7, 0, 0, 0]
    for p in range(4):
        R = 16 + 14 * (p % 3)
        groups = []
        if p == 0:
            for q in range(1, 1 + AH):
                groups += [(q, g) for g in issue(q)]
        elif p + AH < 4:
            groups += [(p + AH, g) for g in issue(p + AH)]
        later = lambda: sum(issued[p + 1:])
        V = []
        V += [f"v_mov_b32_dpp v{R+8+i}, v{R+i} wave_shr:1 row_mask:0xf bank_mask:0xf" for i in range(4)]
        toks = [R + 12, R + 8, R + 10, R, R + 2]
        def unp(t):
            o = []
            for h in range(2):
                o.append(f"v_lshlrev_b32 v{KT + 4*t + 2*h}, 16, v{toks[t] + h}")
                o.append(f"v_and_b32 v{KT + 4*t + 2*h + 1}, 0xffff0000, v{toks[t] + h}")
            return o
        V += unp(3) + unp(4)
        V += [f"v_mov_b32_dpp v{R+12+i}, v{R+10+i} wave_shr:1 row_mask:0xf bank_mask:0xf" for i in range(2)]
        V += unp(1) + unp(2) + unp(0)
        for T in range(2):
            for t in range(4):
                for c in range(4):
                    V.append(f"v_mul_f32 v{PR + 16*T + 4*t + c}, s{60 + 4*(3-t) + c}, v{KT + 4*(T+t) + c}")
        V += [f"v_cvt_pk_bf16_f32 v{PR+i}, 0, v{PR+i}" for i in range(32)]
        for t in range(1, 4):
            for T in range(2):
                for c in range(4):
                    V.append(f"v_add_f32 v{PR+16*T+c}, v{PR+16*T+c}, v{PR+16*T+4*t+c}")
            for T in range(2):
                for c in range(4):
                    V.append(f"v_cvt_pk_bf16_f32 v{PR+16*T+c}, 0, v{PR+16*T+c}")
        A(f"s_waitcnt vmcnt({2 + later()})")
        pos = [i * len(V) // len(groups) for i in range(len(groups))] if groups else []
        for i, ln in enumerate(V):
            while pos and pos[0] == i:
                pos.pop(0)
                q, g = groups.pop(0)
                for x in g:
                    A(x)
                issued[q] += len(g)
            A(ln)
        A(f"s_waitcnt vmcnt({later()})")
        for t in range(2):
            for h in range(2):
                unpack_lo(A, VT + 4 * t + 2 * h, R + 4 + 2 * t + h)
                unpack_hi(A, VT + 4 * t + 2 * h + 1, R + 4 + 2 * t + h)
        for T in range(2):
            for c in range(4):
                A(f"v_mul_f32 v{PR+16*T+c}, v{PR+16*T+c}, v{VT+4*T+c}")
        for ch in range(4):
            A(f"v_cvt_pk_bf16_f32 v{PK+ch}, v{PR+16+ch}, v{PR+ch}")
        for ch in range(4):
            A(f"ds_write_b32 v10, v{PK+ch} offset:{1024 * (3 - p) + ch * XCH}")
        A("s_waitcnt lgkmcnt(0)")
        A.ts_mark(p)
        A("s_barrier")


def gen_k1_mfma(A):
    A("s_lshl_b32 s44, s31, 2")
    A("s_add_u32 s44, s44, s28")
    A("s_lshl_b32 s45, s44, 12")
    A("s_add_u32 s48, s10, s45")
    A("s_addc_u32 s49, s11, 0")
    A("s_mov_b32 s50, 4096")
    A("s_mov_b32 s51, 0x20000")
    A("v_lshrrev_b32 v3, 1, v0")
    A("v_mul_u32_u24 v3, 1152, v3")
    A("v_and_b32 v4, 1, v0")
    A("v_lshl_add_u32 v3, v4, 6, v3")
    A("buffer_load_dword a1, v3, s[32:35], s42 offen")
    A("buffer_load_dword a2, v3, s[36:39], s42 offen")
    A("v_lshlrev_b32 v3, 4, v2")
    C0 = 16
    for i in range(4):
        for c in range(3):
            r = C0 + 16 * c + 4 * i
            A(f"buffer_load_dwordx4 v[{r}:{r+3}], v3, s[48:51], 0 offen offset:{1024*i + 4*c}")
    A("s_barrier")
    A("s_lshl_b32 s45, s44, 1")
    A("s_and_b32 s46, s45, 0xfffffffc")
    A("s_add_u32 s52, s12, s46")
    A("s_addc_u32 s53, s13, 0")
    A("s_load_dword s54, s[52:53], 0")
    srd(A, 56, 14, ACT_BYTES, Y_OFF)
    A(f"s_mul_i32 s60, s28, {KCH}")
    A(f"s_mul_i32 s61, s28, {XCH}")
    A(f"s_add_u32 s61, s61, {XBASE}")
    A("v_add_u32 v4, s60, v3")
    A("v_mov_b32 v8, 0")
    A("v_mov_b32 v9, 0")
    A("v_mov_b32 v10, 0")
    A("v_mov_b32 v11, 0")
    A("v_lshlrev_b32 v5, 3, v2")
    A("v_add_u32 v5, s61, v5")
    A("ds_write_b64 v5, v[8:9] offset:4096")
    A("v_and_b32 v12, 15, v2")
    A("v_lshrrev_b32 v13, 4, v2")
    A("v_lshlrev_b32 v14, 3, v13")
    A("v_sub_u32 v6, v12, v14")
    A("v_add_u32 v6, 25, v6")
    A("v_and_b32 v7, 3, v6")
    A("v_sub_u32 v6, v6, v7")
    A("v_lshlrev_b32 v6, 1, v6")
    A(f"v_mul_u32_u24 v7, {KCOPY}, v7")
    A("v_add3_u32 v6, v6, v7, s60")
    A("v_lshlrev_b32 v7, 5, v12")
    A("v_lshl_add_u32 v7, v13, 4, v7")
    A(f"s_add_u32 s62, s61, {4112 - 3584}")
    A("v_sub_u32 v7, s62, v7")
    A("v_lshlrev_b32 v15, 5, v12")
    A("v_lshl_add_u32 v15, v13, 3, v15")
    A(f"s_add_u32 s62, s61, {2 * (2044 - 1792)}")
    A("v_sub_u32 v15, s62, v15")
    A("v_mul_u32_u24 v1, 18432, v12")
    A("v_lshl_add_u32 v1, v13, 3, v1")
    A("s_lshl_b32 s62, s44, 5")
    A("v_add_u32 v1, s62, v1")
    A("s_waitcnt lgkmcnt(0)")
    A("s_and_b32 s45, s44, 1")
    A("s_lshl_b32 s46, s54, 16")
    A("s_and_b32 s47, s54, 0xffff0000")
    A("s_cmp_eq_u32 s45, 0")
    A("s_cselect_b32 s54, s46, s47")
    O = 64
    for i in range(4):
        A(f"s_waitcnt vmcnt({3 * (3 - i)})")
        c0, c2, c4 = C0 + 4 * i, C0 + 16 + 4 * i, C0 + 32 + 4 * i
        o1, o3 = O + 8 * i, O + 8 * i + 4
        for k in range(4):
            A(f"v_alignbit_b32 v{o1+k}, v{c2+k}, v{c0+k}, 16")
        for k in range(4):
            A(f"v_alignbit_b32 v{o3+k}, v{c4+k}, v{c2+k}, 16")
        off = 32 + 1024 * i
        A(f"ds_write_b128 v4, v[{c0}:{c0+3}] offset:{off}")
        A(f"ds_write_b128 v4, v[{o1}:{o1+3}] offset:{off + KCOPY}")
        A(f"ds_write_b128 v4, v[{c2}:{c2+3}] offset:{off + 2*KCOPY}")
        A(f"ds_write_b128 v4, v[{o3}:{o3+3}] offset:{off + 3*KCOPY}")
    A("v_lshlrev_b32 v99, 16, v16")
    A("v_mov_b32 v96, 0")
    A("v_mov_b32 v97, 0")
    A("v_mov_b32 v98, 0")
    A("v_mov_b32 v100, 0")
    A("v_mov_b32 v101, 0")
    A("v_mov_b32 v102, 0")
    A("v_mov_b32 v103, v16")
    A("v_mov_b32 v104, 0")
    A("v_mov_b32 v105, 0")
    A("v_mov_b32 v106, v99")
    A("v_alignbit_b32 v107, v17, v16, 16")
    A("s_mov_b64 s[64:65], exec")
    A("s_mov_b64 exec, 1")
    for c in range(4):
        A(f"ds_write_b128 v4, v[8:11] offset:{c*KCOPY}")
    A(f"ds_write_b128 v4, v[8:11] offset:16")
    A(f"ds_write_b128 v4, v[96:99] offset:{16 + KCOPY}")
    A(f"ds_write_b128 v4, v[100:103] offset:{16 + 2*KCOPY}")
    A(f"ds_write_b128 v4, v[104:107] offset:{16 + 3*KCOPY}")
    A("s_mov_b64 exec, s[64:65]")
    A("s_waitcnt lgkmcnt(0)")
    ACC = 16
    SB = 48
    TMP = 112

    def a_read(dst, r, i):
        off = 64 * r + 512 * i
        return [f"ds_read_b64 {dst(0)}, v6 offset:{off}", f"ds_read_b64 {dst(2)}, v6 offset:{off+8}"]

    def res(r, i):
        return (i * 8 + r) * 4

    n = 0
    for i in range(4):
        for r in range(8):
            b = res(r, i)
            for ln in a_read(lambda o, b=b: f"a[{b+o}:{b+o+1}]", r, i):
                A(ln)
            n += 2
            if n % 12 == 0:
                A("s_waitcnt lgkmcnt(4)")
    first = set()

    def mfma(t, aop, bop):
        c = "0" if t not in first else f"v[{ACC+4*t}:{ACC+4*t+3}]"
        first.add(t)
        return f"v_mfma_f32_16x16x32_bf16 v[{ACC+4*t}:{ACC+4*t+3}], {aop}, {bop}, {c}"

    def b_read(reg, r, m):
        return f"ds_read_b128 v[{reg}:{reg+3}], v7 offset:{512 * (7 - m) + 64 * r}"

    def stream_a(buf, p, r):
        out = []
        for k, i in enumerate(range(4, 8 - 2 * p)):
            reg = SB + 32 * buf + 4 * k
            out += a_read(lambda o, reg=reg: f"v[{reg+o}:{reg+o+1}]", r, i)
        return out

    def stream_b(buf, p, r):
        return [b_read(SB + 32 * buf + 16 + 4 * k, r, m) for k, m in enumerate((2 * p, 2 * p + 1))]

    def epi_read(t):
        x = TMP + 2 * (t & 1)
        return f"ds_read_b64 v[{x}:{x+1}], v15 offset:{512*(7-t)}"

    def epi_valu(t):
        x, e = TMP + 2 * (t & 1), TMP + 4
        acc = ACC + 4 * t
        o = acc
        L = []
        L += [f"v_and_b32 v{e}, 0xffff0000, v{x+1}", f"v_lshlrev_b32 v{e+1}, 16, v{x+1}",
              f"v_and_b32 v{e+2}, 0xffff0000, v{x}", f"v_lshlrev_b32 v{e+3}, 16, v{x}"]
        L += [f"v_cvt_pk_bf16_f32 v{e+4+r}, 0, v{acc+r}" for r in range(4)]
        L += [f"v_mul_f32 v{e+r}, s54, v{e+r}" for r in range(4)]
        L += [f"v_cvt_pk_bf16_f32 v{e+r}, 0, v{e+r}" for r in range(4)]
        L += [f"v_add_f32 v{e+r}, v{e+r}, v{e+4+r}" for r in range(4)]
        L += [f"v_cvt_pk_bf16_f32 v{o}, v{e}, v{e+1}", f"v_cvt_pk_bf16_f32 v{o+1}, v{e+2}, v{e+3}"]
        return L

    def epi_store(t):
        o = ACC + 4 * t
        A(f"s_mov_b32 s62, {t * 16 * 18432}")
        A(f"buffer_store_dwordx2 v[{o}:{o+1}], v1, s[56:59], s62 offen")

    if EXP.get('nomfma'):
        for p in range(4):
            A.ts_mark(p)
            A("s_barrier")
        return
    buf = 0
    for ln in stream_a(0, 0, 0):
        A(ln)
    for p in range(2):
        A.ts_mark(p)
        A("s_barrier")
        for ln in stream_b(buf, p, 0):
            A(ln)
        ev = (epi_valu(0) + epi_valu(1)) if p == 1 else []
        for r in range(8):
            if r < 7:
                nxt = stream_b(buf ^ 1, p, r + 1) + stream_a(buf ^ 1, p, r + 1)
            elif p == 0:
                nxt = stream_a(buf ^ 1, 1, 0)
            else:
                nxt = []
            if p == 1 and r == 0:
                nxt += [epi_read(0), epi_read(1)]
            if p == 1 and r >= 1:
                k = -(-len(ev) // (8 - r))
                nxt += ev[:k]
                ev = ev[k:]
            A("s_waitcnt lgkmcnt(0)")
            mf = []
            for i in range(8 - 2 * p):
                aop = f"a[{res(r,i)}:{res(r,i)+3}]" if i < 4 else f"v[{SB+32*buf+4*(i-4)}:{SB+32*buf+4*(i-4)+3}]"
                for k, m in enumerate((2 * p, 2 * p + 1)):
                    if i + m <= 7:
                        mf.append(mfma(i + m, aop, f"v[{SB+32*buf+16+4*k}:{SB+32*buf+16+4*k+3}]"))
            for j, ln in enumerate(mf):
                A(ln)
                k = -(-len(nxt) // (len(mf) - j))
                for x in nxt[:k]:
                    A(x)
                nxt = nxt[k:]
            buf ^= 1
    for p in range(2, 4):
        if p == 2:
            A(epi_read(2))
            A(epi_read(3))
            A("s_waitcnt lgkmcnt(0)")
        A.ts_mark(p)
        A("s_barrier")
        ev = (epi_valu(2) + epi_valu(3)) if p == 2 else []
        frs = [(r, m) for r in range(8) for m in (2 * p, 2 * p + 1)]
        for k, (r, m) in enumerate(frs[:15]):
            A(b_read(SB + 4 * k, r, m))
        nm = sum(1 for (r, m) in frs for i in range(8 - 2 * p) if i + m <= 7)
        for k, (r, m) in enumerate(frs):
            if k == 0:
                A("s_waitcnt lgkmcnt(13)")
                A(b_read(SB + 60, *frs[15]))
            elif k % 2 == 0:
                A(f"s_waitcnt lgkmcnt({14 - k})")
            for i in range(8 - 2 * p):
                if i + m <= 7:
                    A(mfma(i + m, f"a[{res(r,i)}:{res(r,i)+3}]", f"v[{SB+4*k}:{SB+4*k+3}]"))
                    q = -(-len(ev) // nm)
                    for x in ev[:q]:
                        A(x)
                    ev = ev[q:]
                    nm -= 1
        t0 = 2 * p
        A(epi_read(t0))
        A(epi_read(t0 + 1))
        A("s_nop 6")
        A("s_waitcnt lgkmcnt(0)")
        for ln in epi_valu(t0) + epi_valu(t0 + 1):
            A(ln)
        for t in (range(6) if p == 2 else (6, 7)):
            epi_store(t)


def HELPER_PREF(A, prefetch_w):
    A("s_getpc_b64 s[52:53]")
    A("K1_PC:")
    A("s_add_u32 s52, s52, CODE_PF_BEGIN-K1_PC")
    A("s_addc_u32 s53, s53, 0")
    A("s_mov_b32 s54, CODE_PF_END-CODE_PF_BEGIN")
    A("s_mov_b32 s55, 0x20000")
    A("s_lshl_b32 s57, s31, 12")
    A("v_lshlrev_b32 v8, 3, v0")
    srd(A, 60, 16, 576 * 9216)
    srd(A, 64, 18, 576 * 9216)
    if EXP.get('k1full', 0):
        srd(A, 72, 20, 4608 * 1152)
        A("v_cmp_gt_u32 vcc, 371, v0")
        A("s_mul_i32 s58, s31, 371")
        A("v_add_u32 v12, s58, v0")
        A("s_mov_b32 s58, 0x1c71c71d")
        A("v_mul_hi_u32 v13, v12, s58")
        A("v_mul_u32_u24 v15, 8064, v13")
        A("v_lshl_add_u32 v15, v12, 7, v15")
        A("v_lshlrev_b32 v9, 7, v12")
        A("v_mov_b32 v14, 0x7fffffff")
        A("v_cndmask_b32 v15, v14, v15, vcc")
        A("v_cndmask_b32 v9, v14, v9, vcc")
        A("s_mul_i32 s70, s29, 663552")
    else:
        A("v_cmp_gt_u32 vcc, 165, v0")
        A("s_mul_i32 s58, s31, 165")
        A("v_add_u32 v12, s58, v0")
        A("v_lshrrev_b32 v13, 2, v12")
        A("v_mul_u32_u24 v15, 9216, v13")
        A("v_and_b32 v13, 1, v12")
        A("v_lshl_add_u32 v15, v13, 7, v15")
        A("v_bfe_u32 v13, v12, 1, 1")
        A("v_mul_u32_u24 v13, 640, v13")
        A("v_add_u32 v15, v15, v13")
        A("v_mov_b32 v14, 0x7fffffff")
        A("v_cndmask_b32 v15, v14, v15, vcc")
    A("s_mul_i32 s59, s29, 1152")
    A("s_waitcnt vmcnt(0)")


def W_PREF(A, prefetch_w):
    A("buffer_load_dword a0, v8, s[52:55], s57 offen")
    if not prefetch_w:
        return
    A("buffer_load_dword a1, v15, s[60:63], s59 offen")
    A("buffer_load_dword a2, v15, s[64:67], s59 offen")
    if EXP.get('k1full', 0):
        A("buffer_load_dword a3, v9, s[72:75], s70 offen")


def gen_k1_other(A, prefetch_w):
    NPF = (4 if EXP.get('k1full', 0) else 3) if prefetch_w else 1
    A("s_sub_u32 s31, s30, 18")
    A("s_waitcnt lgkmcnt(0)")
    srd(A, 32, 4, ACT_BYTES)
    srd(A, 36, 6, ACT_BYTES)
    A("s_mul_i32 s44, s31, 73728")
    A("s_add_u32 s44, s44, 1024")
    for j in range(3):
        A(f"s_add_u32 s45, s44, {j * 14 * 73728}")
        A(f"buffer_load_dwordx4 a[{8+8*j}:{11+8*j}], v3, s[32:35], s45 offen")
        A(f"buffer_load_dwordx4 a[{12+8*j}:{15+8*j}], v3, s[36:39], s45 offen")
    srd(A, 32, 26, 576 * 6912)
    srd(A, 36, 24, 1152)
    srd(A, 40, 14, 6912, MOD_OFF if MOD_OFF else None)
    srd(A, 44, 22, ACT_BYTES)
    srd(A, 48, 14, ACT_BYTES, LN1_OFF)
    A("s_sub_u32 s69, s2, 144")
    A("s_lshl_b32 s69, s69, 7")
    A("v_lshrrev_b32 v3, 3, v0")
    A("v_mul_u32_u24 v5, 6912, v3")
    A("v_lshl_add_u32 v5, v4, 4, v5")
    A("v_lshlrev_b32 v6, 1, v3")
    A("s_sub_u32 s56, s31, 10")
    A("s_lshl_b32 s56, s56, 3")
    A("s_add_u32 s56, s56, s28")
    A("s_lshl_b32 s56, s56, 3")
    A("s_add_u32 s56, s56, s29")
    A("s_mul_i32 s56, s56, 9216")
    A("v_lshrrev_b32 v10, 3, v2")
    A("v_mul_u32_u24 v10, 1152, v10")
    A("v_and_b32 v11, 7, v2")
    A("v_lshl_add_u32 v10, v11, 4, v10")
    HELPER_PREF(A, prefetch_w)
    if EXP.get('nohelp'):
        A("s_branch K1_DONE")
    A("s_cmp_ge_u32 s2, 198")
    A("s_cbranch_scc1 K1_H1")
    for i in range(9):
        A(f"buffer_load_ushort v{52+i}, v6, s[36:39], 0 offen offset:{128*i}")
    for i in range(9):
        A(f"s_add_u32 s68, s69, {i * 64 * 6912}")
        A(f"buffer_load_dwordx4 v[{16+4*i}:{19+4*i}], v5, s[32:35], s68 offen")
    A("K1_H1:")
    A("s_cmp_lt_u32 s31, 10")
    A("s_cbranch_scc1 K1_H2")
    for i in range(9):
        A(f"buffer_load_dwordx4 v[{16+4*i}:{19+4*i}], v10, s[44:47], s56 offen offset:{128*i}")
    A("K1_H2:")
    W_PREF(A, prefetch_w)
    A("s_cmp_ge_u32 s2, 198")
    A("s_cbranch_scc1 K1_NOGEMV")
    A(f"s_waitcnt vmcnt({9 + NPF})")
    A("s_mov_b32 s46, 0xbfb8aa3b")
    for i in range(9):
        A(f"v_lshlrev_b32 v{52+i}, 16, v{52+i}")
        A(f"v_mul_f32 v{64+i}, s46, v{52+i}")
    for i in range(9):
        A(f"v_exp_f32 v{64+i}, v{64+i}")
    for i in range(9):
        A(f"v_add_f32 v{64+i}, 1.0, v{64+i}")
    for i in range(9):
        A(f"v_rcp_f32 v{64+i}, v{64+i}")
    for i in range(9):
        A(f"v_mul_f32 v{52+i}, v{52+i}, v{64+i}")
    for i in range(9):
        rnd(A, 52 + i, 52 + i)
    for i in range(9):
        A(f"s_waitcnt vmcnt({8 - i + NPF})")
        for k in range(4):
            unpack_lo(A, 64 + 2 * k, 16 + 4 * i + k)
            unpack_hi(A, 65 + 2 * k, 16 + 4 * i + k)
        for k in range(8):
            if i == 0:
                A(f"v_mul_f32 v{72+k}, v{52+i}, v{64+k}")
            else:
                A(f"v_fmac_f32 v{72+k}, v{52+i}, v{64+k}")
    A("v_lshlrev_b32 v7, 5, v0")
    A("ds_write_b128 v7, v[72:75]")
    A("ds_write_b128 v7, v[76:79] offset:16")
    A("s_waitcnt lgkmcnt(0)")
    A("s_barrier")
    A("v_lshlrev_b32 v8, 2, v2")
    A("v_lshl_add_u32 v8, v1, 11, v8")
    for k in range(8):
        A(f"ds_read_b32 v{16+k}, v8 offset:{256*k}")
    A("s_waitcnt lgkmcnt(0)")
    for k in range(1, 8):
        A(f"v_add_f32 v16, v16, v{16+k}")
    A("v_lshlrev_b32 v9, 2, v0")
    A("ds_write_b32 v9, v16 offset:16384")
    A("s_waitcnt lgkmcnt(0)")
    A("s_barrier")
    A("s_cmp_lg_u32 s28, 0")
    A("s_cbranch_scc1 K1_DONE")
    A("v_lshlrev_b32 v8, 2, v2")
    for k in range(8):
        A(f"ds_read_b32 v{16+k}, v8 offset:{16384 + 256*k}")
    A("s_waitcnt lgkmcnt(0)")
    for k in range(1, 8):
        A(f"v_add_f32 v16, v16, v{16+k}")
    A("v_cvt_pk_bf16_f32 v16, v16, v16")
    A("v_lshlrev_b32 v8, 1, v2")
    A("buffer_store_short v16, v8, s[40:43], s69 offen")
    A("s_branch K1_DONE")
    A("K1_NOGEMV:")
    A("s_cmp_lt_u32 s31, 10")
    A("s_cbranch_scc1 K1_DONE")
    A(f"s_waitcnt vmcnt({NPF})")
    U = 56
    for i in range(36):
        unpack_lo(A, U + 2 * i, 16 + i)
        unpack_hi(A, U + 2 * i + 1, 16 + i)
    A(f"v_pk_add_f32 v[12:13], v[{U}:{U+1}], v[{U+2}:{U+3}]")
    A(f"v_pk_mul_f32 v[14:15], v[{U}:{U+1}], v[{U}:{U+1}]")
    A(f"v_pk_fma_f32 v[14:15], v[{U+2}:{U+3}], v[{U+2}:{U+3}], v[14:15]")
    for i in range(2, 36):
        A(f"v_pk_add_f32 v[12:13], v[12:13], v[{U+2*i}:{U+2*i+1}]")
        A(f"v_pk_fma_f32 v[14:15], v[{U+2*i}:{U+2*i+1}], v[{U+2*i}:{U+2*i+1}], v[14:15]")
    A("v_add_f32 v12, v12, v13")
    A("v_add_f32 v13, v14, v15")
    for ctrl in ("quad_perm:[1,0,3,2]", "quad_perm:[2,3,0,1]", "row_half_mirror"):
        A("s_nop 1")
        A(f"v_add_f32_dpp v12, v12, v12 {ctrl} row_mask:0xf bank_mask:0xf")
        A(f"v_add_f32_dpp v13, v13, v13 {ctrl} row_mask:0xf bank_mask:0xf")
    A("s_mov_b32 s58, 0x3ae38e39")
    A("s_mov_b32 s59, 0x3727c5ac")
    A("v_mul_f32 v12, s58, v12")
    A("v_mul_f32 v13, s58, v13")
    A("v_fma_f32 v13, -v12, v12, v13")
    A("v_max_f32 v13, 0, v13")
    rnd(A, 12, 12)
    rnd(A, 13, 13)
    A("v_add_f32 v13, s59, v13")
    rnd(A, 13, 13)
    A("v_sqrt_f32 v13, v13")
    A("s_nop 0")
    rnd(A, 13, 13)
    A("v_rcp_f32 v13, v13")
    for i in range(72):
        A(f"v_sub_f32 v{U+i}, v{U+i}, v12")
    for i in range(72):
        rnd(A, U + i, U + i)
    for i in range(72):
        A(f"v_mul_f32 v{U+i}, v{U+i}, v13")
    for i in range(36):
        A(f"v_cvt_pk_bf16_f32 v{16+i}, v{U+2*i}, v{U+2*i+1}")
    for i in range(9):
        A(f"buffer_store_dwordx4 v[{16+4*i}:{19+4*i}], v10, s[48:51], s56 offen offset:{128*i}")
    A("K1_DONE:")
```

```python
from asmlib import *
from k1 import MOD_OFF, Y_OFF, H2F_OFF, X1B_OFF, LN1_OFF, ACT_BYTES, unpack_lo, unpack_hi, rnd

K2_LDS = 9216 + 1024


def rnd8(A, x, pk=None):
    for k in range(8):
        rnd(A, x + k, x + k)


def unpack8(A, d, s):
    for k in range(4):
        unpack_lo(A, d + 2 * k, s + k)
        unpack_hi(A, d + 2 * k + 1, s + k)


def pk8(A, op, d, a, b):
    for k in range(4):
        A(f"{op} v[{d+2*k}:{d+2*k+1}], v[{a+2*k}:{a+2*k+1}], v[{b+2*k}:{b+2*k+1}]")


def ln_stats(A, X, S, lds_off, vred_w, vred_r, T, between=None):
    A(f"v_pk_add_f32 v[{T}:{T+1}], v[{X}:{X+1}], v[{X+2}:{X+3}]")
    A(f"v_pk_add_f32 v[{T+2}:{T+3}], v[{X+4}:{X+5}], v[{X+6}:{X+7}]")
    A(f"v_pk_mul_f32 v[{T+4}:{T+5}], v[{X}:{X+1}], v[{X}:{X+1}]")
    A(f"v_pk_mul_f32 v[{T+6}:{T+7}], v[{X+4}:{X+5}], v[{X+4}:{X+5}]")
    A(f"v_pk_fma_f32 v[{T+4}:{T+5}], v[{X+2}:{X+3}], v[{X+2}:{X+3}], v[{T+4}:{T+5}]")
    A(f"v_pk_fma_f32 v[{T+6}:{T+7}], v[{X+6}:{X+7}], v[{X+6}:{X+7}], v[{T+6}:{T+7}]")
    A(f"v_pk_add_f32 v[{T}:{T+1}], v[{T}:{T+1}], v[{T+2}:{T+3}]")
    A(f"v_pk_add_f32 v[{T+4}:{T+5}], v[{T+4}:{T+5}], v[{T+6}:{T+7}]")
    A(f"v_add_f32 v{S}, v{T}, v{T+1}")
    A(f"v_add_f32 v{S+1}, v{T+4}, v{T+5}")
    A("s_nop 1")
    A(f"v_add_f32_dpp v{S}, v{S}, v{S} row_ror:8 row_mask:0xf bank_mask:0xf")
    A(f"v_add_f32_dpp v{S+1}, v{S+1}, v{S+1} row_ror:8 row_mask:0xf bank_mask:0xf")
    A(f"v_mov_b32 v{T}, v{S}")
    A(f"v_mov_b32 v{T+1}, v{S+1}")
    A("s_nop 1")
    A(f"v_permlane16_swap_b32 v{S}, v{T}")
    A(f"v_permlane16_swap_b32 v{S+1}, v{T+1}")
    A(f"v_add_f32 v{S}, v{S}, v{T}")
    A(f"v_add_f32 v{S+1}, v{S+1}, v{T+1}")
    A(f"v_mov_b32 v{T}, v{S}")
    A(f"v_mov_b32 v{T+1}, v{S+1}")
    A("s_nop 1")
    A(f"v_permlane32_swap_b32 v{S}, v{T}")
    A(f"v_permlane32_swap_b32 v{S+1}, v{T+1}")
    A(f"v_add_f32 v{S}, v{S}, v{T}")
    A(f"v_add_f32 v{S+1}, v{S+1}, v{T+1}")
    A(f"ds_write_b64 v{vred_w}, v[{S}:{S+1}] offset:{lds_off}")
    if between:
        between()
    A("s_waitcnt lgkmcnt(0)")
    A("s_barrier")
    for k in range(4):
        A(f"ds_read_b128 v[{T+4*k}:{T+4*k+3}], v{vred_r} offset:{lds_off + 16*k}")
    A(f"ds_read_b64 v[{T+16}:{T+17}], v{vred_r} offset:{lds_off + 64}")
    A("s_waitcnt lgkmcnt(0)")
    for a, b in ((0, 2), (4, 6), (8, 10), (12, 14), (0, 4), (8, 12), (0, 8), (0, 16)):
        A(f"v_pk_add_f32 v[{T+a}:{T+a+1}], v[{T+a}:{T+a+1}], v[{T+b}:{T+b+1}]")
    A(f"v_mul_f32 v{S}, s40, v{T}")
    A(f"v_mul_f32 v{S+1}, s40, v{T+1}")
    A(f"v_fma_f32 v{S+1}, -v{S}, v{S}, v{S+1}")
    A(f"v_max_f32 v{S+1}, 0, v{S+1}")
    rnd(A, S, S)
    rnd(A, S + 1, S + 1)
    A(f"v_add_f32 v{S+1}, s41, v{S+1}")
    rnd(A, S + 1, S + 1)
    A(f"v_sqrt_f32 v{S+1}, v{S+1}")
    A("s_nop 0")
    rnd(A, S + 1, S + 1)
    A(f"v_rcp_f32 v{S+1}, v{S+1}")


def gen_k2(A, name="ln_kernel"):
    kernel_header(A, name)
    A("s_cmp_ge_u32 s2, 256")
    A("s_cbranch_scc1 K2_END")
    A.ts_begin()
    A("s_load_dwordx2 s[4:5], s[0:1], 0")
    A("s_load_dwordx2 s[6:7], s[0:1], 112")
    A("v_and_b32 v1, 7, v0")
    A("v_lshrrev_b32 v2, 3, v0")
    A("v_lshrrev_b32 v3, 6, v0")
    A("v_and_b32 v4, 63, v0")
    A("v_readfirstlane_b32 s28, v3")
    A("v_mul_u32_u24 v5, 1152, v1")
    A("v_lshl_add_u32 v5, v2, 4, v5")
    A("s_mul_i32 s29, s2, 9216")
    A("v_lshlrev_b32 v6, 5, v0")
    A("s_lshr_b32 s30, s2, 1")
    A("s_mul_i32 s30, s30, 18432")
    A("s_and_b32 s31, s2, 1")
    A("s_lshl_b32 s32, s31, 4")
    A("s_add_u32 s32, s32, s30")
    A(f"s_add_u32 s32, s32, {Y_OFF}")
    A(f"s_add_u32 s36, s29, {LN1_OFF}")
    A(f"s_add_u32 s37, s30, {X1B_OFF}")
    A(f"s_add_u32 s38, s30, {H2F_OFF}")
    A("s_lshl_b32 s33, s28, 10")
    A("s_mov_b32 m0, s33")
    A("v_lshlrev_b32 v7, 4, v2")
    A("s_mov_b32 s34, 3456")
    A(f"s_mov_b32 s10, {ACT_BYTES}")
    A("s_mov_b32 s11, 0x20000")
    A(f"s_mov_b32 s14, {LN1_OFF + ACT_BYTES}")
    A("s_mov_b32 s15, 0x20000")
    A("s_waitcnt lgkmcnt(0)")
    A.ts_mark(0)
    A("s_mov_b32 s8, s4")
    A("s_mov_b32 s9, s5")
    A("s_mov_b32 s12, s6")
    A("s_mov_b32 s13, s7")
    A("buffer_load_dwordx4 v6, s[12:15], s32 offen lds")
    A("buffer_load_dwordx4 v[40:43], v5, s[12:15], s36 offen")
    A("buffer_load_dwordx4 v[24:27], v7, s[12:15], 0 offen offset:1152")
    A("buffer_load_dwordx4 v[20:23], v7, s[12:15], 0 offen")
    A("buffer_load_dwordx4 v[28:31], v7, s[12:15], 0 offen offset:2304")
    A("buffer_load_dwordx4 v[16:19], v5, s[8:11], s29 offen")
    A("buffer_load_dwordx4 v[36:39], v7, s[12:15], s34 offen offset:1152")
    A("buffer_load_dwordx4 v[32:35], v7, s[12:15], 0 offen offset:3456")
    A("s_mov_b32 s40, 0x3ae38e39")
    A("s_mov_b32 s41, 0x3727c5ac")
    A("v_lshlrev_b32 v9, 7, v1")
    A("v_lshl_add_u32 v8, v3, 3, v9")
    A("v_and_b32 v10, 3, v4")
    A("v_bfe_u32 v11, v4, 2, 2")
    A("v_lshrrev_b32 v12, 4, v4")
    A("v_lshlrev_b32 v13, 8, v12")
    A("v_lshl_add_u32 v13, v11, 4, v13")
    A("v_lshrrev_b32 v14, 1, v10")
    A("v_lshl_add_u32 v13, v14, 7, v13")
    A("v_and_b32 v14, 1, v10")
    A("v_lshl_add_u32 v13, v14, 3, v13")
    A("v_add_u32 v13, s33, v13")
    A("v_lshrrev_b32 v10, 2, v2")
    A("v_and_b32 v11, 3, v2")
    A("s_lshl_b32 s35, s31, 3")
    A("v_add_u32 v12, s35, v1")
    A("v_lshlrev_b32 v14, 10, v10")
    A("v_lshl_add_u32 v15, v11, 8, v14")
    A("v_lshl_add_u32 v15, v12, 4, v15")
    A("v_lshl_add_u32 v14, v12, 6, v14")
    A("v_lshl_add_u32 v14, v11, 4, v14")
    X, H, S, T, M1, M2, Y = 44, 52, 60, 64, 84, 92, 100
    A("s_waitcnt vmcnt(5)")
    A.ts_mark(1)
    A(f"ds_read_b64_tr_b16 v[{Y+8}:{Y+9}], v13")
    A(f"ds_read_b64_tr_b16 v[{Y+10}:{Y+11}], v13 offset:64")
    unpack8(A, M1, 24)
    unpack8(A, H, 40)
    for k in range(8):
        A(f"v_add_f32 v{M1+k}, 1.0, v{M1+k}")
    rnd8(A, M1)
    pk8(A, "v_pk_mul_f32", H, H, M1)
    rnd8(A, H)
    A("s_waitcnt vmcnt(3)")
    unpack8(A, M2, 20)
    pk8(A, "v_pk_add_f32", H, H, M2)
    rnd8(A, H)
    A("s_waitcnt lgkmcnt(0)")
    unpack8(A, Y, Y + 8)
    pk8(A, "v_pk_mul_f32", H, H, Y)
    rnd8(A, H)
    unpack8(A, M1, 28)
    pk8(A, "v_pk_mul_f32", H, H, M1)
    rnd8(A, H)
    A("s_waitcnt vmcnt(2)")
    unpack8(A, X, 16)
    pk8(A, "v_pk_add_f32", X, X, H)
    for k in range(4):
        A(f"v_cvt_pk_bf16_f32 v{16+k}, v{X+2*k}, v{X+2*k+1}")
    A("buffer_store_dwordx4 v[16:19], v14, s[12:15], s37 offen")
    unpack8(A, X, 16)
    A.ts_mark(2)

    def between():
        A("s_waitcnt vmcnt(1)")
        unpack8(A, M1, 36)
        for k in range(8):
            A(f"v_add_f32 v{M1+k}, 1.0, v{M1+k}")
        rnd8(A, M1)
        unpack8(A, M2, 32)
    ln_stats(A, X, S, 9216, 8, 9, T, between)
    for k in range(8):
        A(f"v_sub_f32 v{H+k}, v{X+k}, v{S}")
    rnd8(A, H)
    for k in range(8):
        A(f"v_mul_f32 v{H+k}, v{H+k}, v{S+1}")
    rnd8(A, H)
    pk8(A, "v_pk_mul_f32", H, H, M1)
    rnd8(A, H)
    pk8(A, "v_pk_add_f32", H, H, M2)
    for k in range(4):
        A(f"v_cvt_pk_bf16_f32 v{20+k}, v{H+2*k}, v{H+2*k+1}")
    A.ts_mark(3)
    A("buffer_store_dwordx4 v[20:23], v15, s[12:15], s38 offen")
    A.ts_end(1)
    A("K2_END:")
    A("s_endpgm")
```

```python
from asmlib import *
from k1 import H2F_OFF, PART_OFF, ACT_BYTES, unpack_lo, unpack_hi

K3_LDS = 4 * 36864
NT = 243
AHEAD = 28

H_A = 0
WF_A = 144
ACC = 16
HH = 144
PA, PB, PC = 216, 220, 222
RD = 226
DA, DB, DC = 234, 235, 236
STV = 237
HLV = 238
TMP = 240
PFW, PFD = 244, 245


def tile_info(T):
    if T < 144:
        c, r = divmod(T, 36)
        return ('A', c, r // 2, r % 2)
    if T < 162:
        r = T - 144
        return ('B', 4, r // 2, r % 2)
    r = T - 162
    return ('C', r // 9, r % 9, 0)


def acc1(buf, mat, ft, tg):
    return ACC + 64 * buf + ((mat * 4 + ft) * 2 + tg) * 4


def acc2(b, nt, tg):
    return 80 + 32 * b + (nt * 2 + tg) * 4


def hh(tg, ks2):
    return HH + (ks2 * 2 + tg) * 4


def gen_k3(A, name="mlp_kernel", store_flags="sc0 sc1", round_gu=False, dma_flags="", PF_TILES=(30, 42, 60, 80), HLEAD=4):
    kernel_header(A, name)
    A("s_cmp_ge_u32 s2, 256")
    A("s_cbranch_scc1 K3_END")
    A.ts_begin()
    A("s_load_dwordx4 s[4:7], s[0:1], 56")
    A("s_load_dwordx2 s[8:9], s[0:1], 72")
    A("s_load_dwordx2 s[10:11], s[0:1], 112")
    A("v_lshrrev_b32 v1, 6, v0")
    A("v_and_b32 v2, 63, v0")
    A("v_readfirstlane_b32 s28, v1")
    A("s_and_b32 s29, s2, 7")
    A("s_lshl_b32 s29, s29, 1")
    A("s_bfe_u32 s30, s2, 0x10003")
    A("s_add_u32 s29, s29, s30")
    A("s_lshr_b32 s31, s2, 4")
    A("s_mul_i32 s32, s29, 288")
    A("s_lshl_b32 s33, s30, 5")
    A("s_add_u32 s33, s33, s32")
    A("s_xor_b32 s34, s30, 1")
    A("s_lshl_b32 s34, s34, 8")
    A("s_add_u32 s34, s34, s32")
    A("s_lshl_b32 s36, s33, 1")
    A("s_lshl_b32 s37, s34, 1")
    A("s_mul_i32 s38, s33, 1152")
    A("s_mul_i32 s39, s34, 1152")
    A("s_lshl_b32 s40, s28, 10")
    A("s_lshl_b32 s41, s31, 3")
    A("s_lshl_b32 s42, s28, 1")
    A("s_add_u32 s41, s41, s42")
    A("s_mul_i32 s41, s41, 18432")
    A(f"s_mul_i32 s42, s29, {ACT_BYTES}")
    A("s_add_u32 s42, s42, s41")
    A("s_mov_b32 s43, 0xbfb8aa3b")
    A("v_lshrrev_b32 v3, 3, v2")
    A("s_lshl_b32 s44, s28, 3")
    A("v_add_u32 v3, s44, v3")
    A("v_and_b32 v4, 7, v2")
    A("v_and_b32 v5, 2, v3")
    A("v_lshrrev_b32 v6, 1, v3")
    A("v_and_b32 v6, 4, v6")
    A("v_or_b32 v5, v5, v6")
    A("v_xor_b32 v5, v5, v4")
    A("v_mul_u32_u24 v6, 9216, v3")
    A(f"v_lshl_add_u32 v{DA}, v5, 4, v6")
    A("v_bfe_u32 v5, v3, 1, 1")
    A("v_and_b32 v6, 4, v3")
    A("v_or_b32 v5, v5, v6")
    A("v_xor_b32 v5, v5, v4")
    A("v_mul_u32_u24 v6, 1152, v3")
    A(f"v_lshl_add_u32 v{DC}, v5, 4, v6")
    A("v_lshrrev_b32 v3, 2, v2")
    A("s_lshl_b32 s44, s28, 4")
    A("v_add_u32 v3, s44, v3")
    A("v_and_b32 v4, 3, v2")
    A("v_lshrrev_b32 v5, 2, v3")
    A("v_and_b32 v5, 2, v5")
    A("v_xor_b32 v5, v5, v4")
    A("v_mul_u32_u24 v6, 9216, v3")
    A(f"v_lshl_add_u32 v{DB}, v5, 4, v6")
    A(f"v_lshlrev_b32 v{HLV}, 4, v2")
    A("s_waitcnt lgkmcnt(0)")
    srd(A, 12, 4, 576 * 9216)
    srd(A, 16, 6, 576 * 9216)
    srd(A, 20, 8, 4608 * 1152)
    srd(A, 24, 10, ACT_BYTES, H2F_OFF)
    srd(A, 48, 10, 16 * ACT_BYTES, PART_OFF)

    vm = {'n': 0, 'done': -1}
    dma_idx = {}
    h_idx = {}

    def vm_issue():
        vm['n'] += 1
        return vm['n'] - 1

    def vm_wait(idx):
        if idx <= vm['done']:
            return None
        cnt = vm['n'] - 1 - idx
        assert cnt <= 63
        vm['done'] = idx
        return f"s_waitcnt vmcnt({cnt})"

    def dma_instrs(T):
        ty, a, b, m = tile_info(T)
        lds = ((T // 9) % 4) * 36864 + (T % 9) * 4096
        out = [f"s_add_u32 m0, s40, {lds}"]
        if ty == 'A':
            out.append(f"s_add_u32 s45, s36, {b * 32 * 9216 + a * 128}")
            out.append(f"buffer_load_dwordx4 v{DA}, s[{12 + 4*m}:{15 + 4*m}], s45 offen {dma_flags} lds")
        elif ty == 'B':
            out.append(f"s_add_u32 s45, s37, {b * 64 * 9216}")
            out.append(f"buffer_load_dwordx4 v{DB}, s[{12 + 4*m}:{15 + 4*m}], s45 offen {dma_flags} lds")
        else:
            if b < 8:
                out.append(f"s_add_u32 s45, s38, {b * 32 * 1152 + a * 128}")
            else:
                out.append(f"s_add_u32 s45, s39, {a * 128}")
            out.append(f"buffer_load_dwordx4 v{DC}, s[20:23], s45 offen {dma_flags} lds")
        return out

    def emit_dma(T):
        for ln in dma_instrs(T):
            A(ln)
        dma_idx[T] = vm_issue()

    def emit_h(ks):
        for tg in range(2):
            r = H_A + (tg * 18 + ks) * 4
            A(f"s_add_u32 s46, s41, {(tg * 18 + ks) * 1024}")
            A(f"buffer_load_dwordx4 a[{r}:{r+3}], v{HLV}, s[24:27], s46 offen")
            h_idx[(tg, ks)] = vm_issue()

    dma_time = {}
    for T in range(0, 9):
        emit_dma(T)
        dma_time[T] = -10
        if T in (1, 4, 6, 8):
            emit_h((1, 4, 6, 8).index(T))
    A("v_lshrrev_b32 v3, 4, v2")
    A("v_bfe_u32 v4, v2, 2, 2")
    A("v_and_b32 v5, 3, v2")
    A("v_lshl_add_u32 v6, v3, 3, v4")
    A("v_lshrrev_b32 v7, 1, v5")
    A("v_and_b32 v8, 1, v5")
    A("v_and_b32 v9, 2, v6")
    A("v_lshrrev_b32 v10, 1, v6")
    A("v_and_b32 v10, 4, v10")
    A("v_or_b32 v9, v9, v10")
    A("v_lshlrev_b32 v11, 7, v6")
    A("v_lshl_add_u32 v11, v8, 3, v11")
    for ft in range(4):
        A(f"v_add_u32 v12, {2*ft}, v7")
        A("v_xor_b32 v12, v12, v9")
        A(f"v_lshl_add_u32 v{PA+ft}, v12, 4, v11")
    A("v_lshrrev_b32 v9, 2, v6")
    A("v_and_b32 v9, 2, v9")
    A("v_lshlrev_b32 v11, 6, v6")
    A("v_lshl_add_u32 v11, v8, 3, v11")
    for ft in range(2):
        A(f"v_add_u32 v12, {2*ft}, v7")
        A("v_xor_b32 v12, v12, v9")
        A(f"v_lshl_add_u32 v{PB+ft}, v12, 4, v11")
    A("v_lshl_add_u32 v6, v3, 2, v4")
    A("v_bfe_u32 v9, v6, 1, 1")
    A("v_and_b32 v10, 4, v6")
    A("v_or_b32 v9, v9, v10")
    A("v_lshlrev_b32 v11, 7, v6")
    for nt in range(4):
        A(f"v_add_u32 v12, {4*(nt>>1)}, v5")
        A("v_xor_b32 v12, v12, v9")
        A(f"v_lshl_add_u32 v13, v12, 4, v11")
        A(f"v_xor_b32 v14, {nt & 1}, v8")
        A(f"v_lshl_add_u32 v{PC+nt}, v14, 3, v13")
    A("v_and_b32 v6, 15, v2")
    A("v_lshlrev_b32 v6, 6, v6")
    A(f"v_lshl_add_u32 v{STV}, v3, 4, v6")
    A("s_mul_i32 s52, s28, 21")
    A("v_add_u32 v6, s52, v2")
    A("v_cmp_gt_u32 vcc, 81, v6")
    A("v_cmp_gt_u32 s[54:55], 21, v2")
    A("s_mul_i32 s52, s31, 18")
    A("s_add_u32 s52, s52, s32")
    A("s_mul_i32 s52, s52, 1152")
    A("s_add_u32 s53, s52, 10368")
    A("s_and_b64 vcc, vcc, s[54:55]")
    A("v_lshlrev_b32 v6, 7, v6")
    A("v_mov_b32 v10, 0x7fffffff")
    A(f"v_cndmask_b32 v{PFD}, v10, v6, vcc")
    A("v_mul_u32_u24 v6, 171, v2")
    A("v_lshrrev_b32 v6, 9, v6")
    A("v_mul_u32_u24 v7, 3, v6")
    A("v_sub_u32 v7, v2, v7")
    A("s_mul_i32 s54, s31, 36")
    A("s_mul_i32 s55, s28, 9")
    A("s_add_u32 s54, s54, s55")
    A("v_cmp_eq_u32 vcc, 2, v7")
    A("v_add_u32 v6, s54, v6")
    A("v_mul_u32_u24 v6, 9216, v6")
    A("v_lshlrev_b32 v8, 7, v7")
    A("s_add_u32 s54, s36, 256")
    A("v_add_u32 v8, s54, v8")
    A("v_mov_b32 v9, s37")
    A("v_cndmask_b32 v8, v8, v9, vcc")
    A("v_cmp_gt_u32 vcc, 27, v2")
    A("v_add_u32 v6, v6, v8")
    A("s_nop 0")
    A(f"v_cndmask_b32 v{PFW}, v10, v6, vcc")

    def rd_setup(stage):
        ty = tile_info(stage * 9)[0]
        base = (stage % 4) * 36864
        src = {'A': [PA, PA + 1, PA + 2, PA + 3], 'B': [PB, PB + 1], 'C': [PC, PC + 1, PC + 2, PC + 3]}[ty]
        return [f"v_add_u32 v{RD + 4*(stage & 1) + i}, {base}, v{s}" for i, s in enumerate(src)]

    def reads(T):
        ty = tile_info(T)[0]
        st = T // 9
        rd = RD + 4 * (st & 1)
        off = (T % 9) * 4096
        w = WF_A + 16 * (T % 3)
        out = []
        for f in range(4):
            for h in range(2):
                if ty == 'A':
                    a, o = rd + f, off + 512 * h
                elif ty == 'B':
                    a, o = rd + (f & 1), off + 2048 * (f >> 1) + 256 * h
                else:
                    a, o = rd + f, off + 2048 * h
                out.append(f"ds_read_b64_tr_b16 a[{w+4*f+2*h}:{w+4*f+2*h+1}], v{a} offset:{o}")
        return out

    def mfmas(T):
        ty, a, b, m = tile_info(T)
        w = WF_A + 16 * (T % 3)
        out = []
        for f in range(4):
            for tg in range(2):
                if ty == 'A':
                    d = acc1(a & 1, m, f, tg)
                    bop = f"a[{H_A + (tg*18 + b)*4}:{H_A + (tg*18 + b)*4 + 3}]"
                    first = (b == 0)
                elif ty == 'B':
                    d = acc1(0, m, f & 1, tg)
                    ks = 2 * b + (f >> 1)
                    bop = f"a[{H_A + (tg*18 + ks)*4}:{H_A + (tg*18 + ks)*4 + 3}]"
                    first = (ks == 0)
                else:
                    d = acc2(a & 1, f, tg)
                    bop = f"v[{hh(tg, b)}:{hh(tg, b)+3}]"
                    first = (b == 0)
                c = "0" if first else f"v[{d}:{d+3}]"
                out.append(f"v_mfma_f32_16x16x32_bf16 v[{d}:{d+3}], a[{w+4*f}:{w+4*f+3}], {bop}, {c}")
        return out

    def epi1(c):
        out = []
        nft = 4 if c < 4 else 2
        buf = c & 1
        for ft in range(nft):
            for tg in range(2):
                G = acc1(buf, 0, ft, tg)
                U = acc1(buf, 1, ft, tg)
                d = hh(tg, 2 * c + (ft >> 1)) + 2 * (ft & 1)
                if round_gu:
                    for e in range(4):
                        out.append(f"v_cvt_pk_bf16_f32 v{U+e}, v{G+e}, v{U+e}")
                    for e in range(4):
                        out.append(f"v_lshlrev_b32 v{G+e}, 16, v{U+e}")
                    for e in range(4):
                        out.append(f"v_and_b32 v{U+e}, 0xffff0000, v{U+e}")
                for e in range(4):
                    out.append(f"v_mul_f32 v{G+e}, s43, v{G+e}")
                for e in range(4):
                    out.append(f"v_exp_f32 v{G+e}, v{G+e}")
                for e in range(4):
                    out.append(f"v_add_f32 v{G+e}, 1.0, v{G+e}")
                for e in range(4):
                    out.append(f"v_rcp_f32 v{G+e}, v{G+e}")
                if round_gu:
                    out.append(f"v_cvt_pk_bf16_f32 v{d}, v{G}, v{G+1}")
                    out.append(f"v_cvt_pk_bf16_f32 v{d+1}, v{G+2}, v{G+3}")
                    out.append(f"v_lshlrev_b32 v{G}, 16, v{d}")
                    out.append(f"v_and_b32 v{G+1}, 0xffff0000, v{d}")
                    out.append(f"v_lshlrev_b32 v{G+2}, 16, v{d+1}")
                    out.append(f"v_and_b32 v{G+3}, 0xffff0000, v{d+1}")
                for e in range(4):
                    out.append(f"v_mul_f32 v{G+e}, v{G+e}, v{U+e}")
                out.append(f"v_cvt_pk_bf16_f32 v{d}, v{G}, v{G+1}")
                out.append(f"v_cvt_pk_bf16_f32 v{d+1}, v{G+2}, v{G+3}")
        return out

    def epi2(nc):
        out = []
        b = nc & 1
        pk = 16 + 16 * b
        for tg in range(2):
            for P in range(2):
                r = pk + (tg * 2 + P) * 4
                for k in range(2):
                    a = acc2(b, 2 * P + k, tg)
                    out.append(f"v_cvt_pk_bf16_f32 v{r+2*k}, v{a}, v{a+1}")
                    out.append(f"v_cvt_pk_bf16_f32 v{r+2*k+1}, v{a+2}, v{a+3}")
            out.append(f"s_add_u32 s47, s42, {tg * 18432 + nc * 2048}")
            for P in range(2):
                r = pk + (tg * 2 + P) * 4
                out.append(('st', f"buffer_store_dwordx4 v[{r}:{r+3}], v{STV}, s[48:51], s47 offen offset:{1024*P} {store_flags}"))
        return out

    for ln in rd_setup(0):
        A(ln)
    w = vm_wait(dma_idx[2])
    A(w)
    A("s_barrier")
    A.ts_mark(0)
    for ln in reads(0) + reads(1):
        A(ln)
    covered = 2
    last_bar = -1
    next_dma = 9
    next_h = 4
    MARGIN = 4

    queue = []
    for T in range(NT):
        ty, a, b, m = tile_info(T)
        if ty in ('A', 'B') and T % 36 == 1 and T >= 36:
            queue += epi1(T // 36 - 1)
            qdead = T + 30 if ty == 'A' else T + 16
        if T == 163:
            queue += epi1(4)
            qdead = 162 + 7
        if ty == 'C' and b == 1 and a >= 1:
            queue += epi2(a - 1)
            qdead = T + 6
        mf = mfmas(T)
        gaps = [[] for _ in range(8)]
        pre = []
        pre.append(f"s_waitcnt lgkmcnt({8 if T + 1 < NT else 0})")
        if ty == 'A' and a == 0:
            w = vm_wait(h_idx[(1, b)])
            if w:
                pre.append(w)
        is_bar = (T + 2 < NT) and covered < T + 2
        if is_bar:
            cand = [Y for Y in dma_time if dma_time[Y] <= T - MARGIN]
            cover = min(max(cand + [T + 2]), T + 10, NT - 1)
            if T < 8:
                cover = min(cover, T + 4)
            assert cover in dma_time
        g0 = 1 if is_bar else 0
        rds = reads(T + 2) if T + 2 < NT else []
        slots = list(range(g0, 8))
        for i, r in enumerate(rds):
            gaps[slots[i * len(slots) // len(rds)]].append(r)
        if T % 9 == 3 and (T // 9 + 1) * 9 < NT:
            for i, ln in enumerate(rd_setup(T // 9 + 1)):
                gaps[2 * i].append(ln)
        if queue:
            left = max(1, qdead - T + 1)
            nq = -(-len(queue) // left)
        else:
            nq = 0
        qitems = [queue.pop(0) for _ in range(min(nq, len(queue)))]
        if T == 36:
            A.ts_mark(1)
        if T == 162:
            A.ts_mark(2)
        for ln in pre:
            A(ln)
        rate = (2 if T % 2 == 0 else 1) if T < 30 else 2
        dma_gaps = [3, 6][:rate]
        for g in range(8):
            A(mf[g])
            if g == 0 and is_bar:
                w = vm_wait(dma_idx[cover])
                if w:
                    A(w)
                A("s_barrier")
                covered = cover
                last_bar = T
            for ln in gaps[g]:
                A(ln)
            if g in dma_gaps and next_dma < NT and next_dma <= T + AHEAD and next_dma - 36 <= last_bar:
                emit_dma(next_dma)
                dma_time[next_dma] = T
                next_dma += 1
            if g == 5 and T % 2 == 1 and next_h < 18:
                emit_h(next_h)
                next_h += 1
            if g == 5 and T in PF_TILES:
                k = PF_TILES.index(T)
                if k < 2:
                    A(f"buffer_load_dword v{TMP+k}, v{PFW}, s[{12+4*k}:{15+4*k}], 0 offen")
                else:
                    A(f"buffer_load_dword v{TMP+k}, v{PFD}, s[20:23], s{50+k} offen")
                vm_issue()
            lo = g * len(qitems) // 8
            hi = (g + 1) * len(qitems) // 8
            for it in qitems[lo:hi]:
                if isinstance(it, tuple):
                    A(it[1])
                    vm_issue()
                else:
                    A(it)
    assert not queue
    A.ts_mark(3)
    A("s_nop 7")
    for it in epi2(8):
        A(it[1] if isinstance(it, tuple) else it)
    A.ts_end(2)
    A("K3_END:")
    A("s_endpgm")
```

```python
from asmlib import *
from k1 import MOD_OFF, X1B_OFF, PART_OFF, ACT_BYTES, unpack_lo, unpack_hi
from k2 import rnd8, unpack8

def gen_k4(A, name="red_kernel"):
    kernel_header(A, name)
    A("s_cmp_ge_u32 s2, 576")
    A("s_cbranch_scc1 K4_END")
    A.ts_begin()
    A("s_load_dwordx2 s[4:5], s[0:1], 96")
    A("s_load_dwordx2 s[6:7], s[0:1], 112")
    A("v_lshrrev_b32 v1, 6, v0")
    A("v_lshlrev_b32 v2, 4, v0")
    A("v_readfirstlane_b32 s28, v1")
    A("s_lshl_b32 s29, s2, 12")
    A("s_lshl_b32 s30, s2, 2")
    A("s_add_u32 s30, s30, s28")
    A("s_mul_hi_u32 s31, s30, 238609295")
    A("s_mul_i32 s32, s31, 18")
    A("s_sub_u32 s32, s30, s32")
    A("v_and_b32 v3, 63, v0")
    A("v_lshrrev_b32 v4, 2, v3")
    A("v_and_b32 v5, 3, v3")
    A("v_lshlrev_b32 v6, 4, v5")
    A("v_mul_u32_u24 v7, 1152, v4")
    A("v_add_u32 v7, v7, v6")
    A("s_lshl_b32 s33, s32, 6")
    A("s_mul_i32 s34, s31, 18432")
    A("s_add_u32 s34, s34, s33")
    A(f"s_add_u32 s33, s33, {5*1152}")
    A("v_and_b32 v8, 1, v5")
    A("v_cmp_eq_u32 vcc, 1, v8")
    A("s_waitcnt lgkmcnt(0)")
    A.ts_mark(0)
    srd(A, 8, 6, 16 * ACT_BYTES, PART_OFF)
    srd(A, 12, 6, ACT_BYTES, X1B_OFF)
    srd(A, 16, 6, 6912, MOD_OFF if MOD_OFF else None)
    srd(A, 20, 4, ACT_BYTES)
    for j in range(16):
        A(f"s_add_u32 s35, s29, {j * ACT_BYTES}")
        A(f"buffer_load_dwordx4 v[{16+4*j}:{19+4*j}], v2, s[8:11], s35 offen")
    A("buffer_load_dwordx4 v[80:83], v2, s[12:15], s29 offen")
    A("buffer_load_dwordx4 v[84:87], v6, s[16:19], s33 offen")
    ACC, U, PK = 88, 96, 104
    for j in range(16):
        A(f"s_waitcnt vmcnt({17 - j})")
        if j == 0:
            A.ts_mark(1)
            unpack8(A, ACC, 16)
        else:
            unpack8(A, U, 16 + 4 * j)
            for k in range(4):
                A(f"v_pk_add_f32 v[{ACC+2*k}:{ACC+2*k+1}], v[{ACC+2*k}:{ACC+2*k+1}], v[{U+2*k}:{U+2*k+1}]")
    for k in range(4):
        A(f"v_cvt_pk_bf16_f32 v{PK+k}, v{ACC+2*k}, v{ACC+2*k+1}")
    A(f"v_cndmask_b32 v{PK+4}, v{PK}, v{PK+2}, vcc")
    A(f"v_cndmask_b32 v{PK+5}, v{PK+1}, v{PK+3}, vcc")
    A(f"v_cndmask_b32 v{PK+6}, v{PK+2}, v{PK}, vcc")
    A(f"v_cndmask_b32 v{PK+7}, v{PK+3}, v{PK+1}, vcc")
    unpack8(A, ACC, PK + 4)
    A("s_waitcnt vmcnt(0)")
    unpack8(A, U, 84)
    for k in range(8):
        A(f"v_mul_f32 v{ACC+k}, v{ACC+k}, v{U+k}")
    rnd8(A, ACC, PK)
    unpack8(A, U, 80)
    for k in range(8):
        A(f"v_add_f32 v{ACC+k}, v{ACC+k}, v{U+k}")
    for k in range(4):
        A(f"v_cvt_pk_bf16_f32 v{PK+k}, v{ACC+2*k}, v{ACC+2*k+1}")
    A.ts_mark(2)
    A(f"buffer_store_dwordx4 v[{PK}:{PK+3}], v7, s[20:23], s34 offen")
    A.ts_end(3)
    A("K4_END:")
    A("s_endpgm")
```

```python
import sys
sys.path.insert(0, "dev")
from asmlib import *
import k1, k2, k3, k4

HEADER = open("adaLN_cond__ssm_conv_h3__glu_gated_glu__prompt.s.ref").read().split("; Override launch")[0]

def build(opts=None):
    o = dict(prefetch_w=True, store_flags="sc0 sc1", round_gu=False)
    o.update(opts or {})
    A = Asm()
    A.TS = o.get('ts', False)
    k1.EXP = o
    k1.gen_k1(A, prefetch_w=o['prefetch_w'])
    A('.p2align 8')
    A('CODE_PF_BEGIN:')
    k2.gen_k2(A)
    k3.gen_k3(A, store_flags=o['store_flags'], round_gu=o['round_gu'], **o.get('k3', {}))
    k4.gen_k4(A)
    A('CODE_PF_END:')
    txt = HEADER
    txt += f"; @launch kernel=conv_kernel grid=(256,1,1) block=(512,1,1) lds={k1.K1_LDS}\n"
    txt += f"; @launch kernel=ln_kernel grid=(256,1,1) block=(576,1,1) lds={k2.K2_LDS}\n"
    txt += f"; @launch kernel=mlp_kernel grid=(256,1,1) block=(256,1,1) lds={k3.K3_LDS}\n"
    txt += f"; @launch kernel=red_kernel grid=(576,1,1) block=(256,1,1) lds=0\n"
    txt += '.amdgcn_target "amdgcn-amd-amdhsa--gfx950"\n.text\n'
    txt += A.text()
    txt += '.section .rodata,"a"\n'
    for name, v, s, acc in [("conv_kernel", 256, 80, 128), ("ln_kernel", 128, 48, 128), ("mlp_kernel", 448, 56, 256), ("red_kernel", 112, 40, 112)]:
        if A.TS:
            s = 102
        txt += ".p2align 6\n" + kernel_desc(name, v, s, acc)
    return txt

if __name__ == "__main__":
    out = sys.argv[1] if len(sys.argv) > 1 else "adaLN_cond__ssm_conv_h3__glu_gated_glu__prompt.s"
    opts = eval(sys.argv[2]) if len(sys.argv) > 2 else {}
    open(out, "w").write(build(opts))
    print("wrote", out)
```
